```python
import torch

def _softmax(x, axis=-1):
    return torch.softmax(x, dim=axis)
def _gelu(x):
    return torch.nn.functional.gelu(x, approximate="tanh")
def _silu(x):
    return torch.nn.functional.silu(x)
def _sigmoid(x):
    return torch.sigmoid(x)
def _layernorm(x, axis=-1, eps=1e-5):
    m = x.mean(dim=axis, keepdim=True)
    v = x.var(dim=axis, keepdim=True, unbiased=False)
    return (x - m) / torch.sqrt(v + eps)
def _scatter_add(tgt, idx, src, axis=0):
    return tgt.clone().index_add_(axis, idx, src)
def _segment_sum(src, seg, n):
    out = torch.zeros((n,) + src.shape[1:], dtype=src.dtype)
    return out.index_add_(0, seg, src)
def _pad(x, pw):
    flat = tuple(v for pair in reversed(pw) for v in pair)
    return torch.nn.functional.pad(x, flat)

kernel_name = 'gated_mix__mha_block_cached__geglu_ffn__decode'

def setup_inputs():

    _w = (lambda a: (lambda t: t.to(torch.bfloat16) if t.is_floating_point() else t)(torch.as_tensor(a)))
    def _A_setup():
        B, Sq, D = 2, 1, 512
        H, Sk, Dh = 32, 4096, 128
        return {
            "x": _w((lambda *s: torch.randn(*s, dtype=torch.bfloat16) * 0.05)(B, Sq, D)),
            "k_cache": _w((lambda *s: torch.randn(*s, dtype=torch.bfloat16) * 3.2)(B, H, Sk, Dh)),
            "v_cache": _w((lambda *s: torch.randn(*s, dtype=torch.bfloat16) * 0.8)(B, H, Sk, Dh)),
            "wq": _w((lambda *s: torch.randn(*s, dtype=torch.bfloat16) * 3.2)(D, H * Dh) * (D ** -0.5)),
            "wo": _w((lambda *s: torch.randn(*s, dtype=torch.bfloat16) * 0.8)(H * Dh, D) * ((H * Dh) ** -0.5)),
        }
    _A_in = _A_setup()

    def _B_setup():
        B, S, D, F = 2, 1, 512, 1376
        return {
            "x": _w((lambda *s: torch.randn(*s, dtype=torch.bfloat16) * 0.05)(B, S, D)),
            "w_gate": _w((lambda *s: torch.randn(*s, dtype=torch.bfloat16) * 0.05)(D, F)),
            "w_up": _w((lambda *s: torch.randn(*s, dtype=torch.bfloat16) * 0.05)(D, F)),
            "w_down": _w((lambda *s: torch.randn(*s, dtype=torch.bfloat16) * 0.05)(F, D)),
        }
    _B_in = _B_setup()

    return {
        "A_x": _A_in["x"],
        "A_k_cache": _A_in["k_cache"],
        "A_v_cache": _A_in["v_cache"],
        "A_wq": _A_in["wq"],
        "A_wo": _A_in["wo"],
        "B_x": _B_in["x"],
        "B_w_gate": _B_in["w_gate"],
        "B_w_up": _B_in["w_up"],
        "B_w_down": _B_in["w_down"],
        "gate_w": _w((lambda *s: torch.randn(*s, dtype=torch.bfloat16) * 0.05)(512) * 16.0),
    }

def reference(A_x, A_k_cache, A_v_cache, A_wq, A_wo, B_x, B_w_gate, B_w_up, B_w_down, gate_w):
    def _A_ref(x, k_cache, v_cache, wq, wo):
        B, Sq, D = x.shape
        H, Dh = 32, 128
        q = (lambda x, *d: x.permute(*d))((x @ wq).reshape(B, Sq, H, Dh), 0, 2, 1, 3)
        scores = torch.einsum("bhqd,bhkd->bhqk", q, k_cache) * (Dh ** -0.5)
        p = _softmax(scores, axis=-1)
        o = torch.einsum("bhqk,bhkd->bhqd", p, v_cache)
        return (lambda x, *d: x.permute(*d))(o, 0, 2, 1, 3).reshape(B, Sq, H * Dh) @ wo

    def _B_ref(x, w_gate, w_up, w_down):
        return (_gelu(x @ w_gate) * (x @ w_up)) @ w_down

    x = A_x
    g = _sigmoid((x * gate_w).sum(-1, keepdims=True))
    a = _A_ref(x, A_k_cache, A_v_cache, A_wq, A_wo)
    b = _B_ref(x, B_w_gate, B_w_up, B_w_down)
    return g * a + (1 - g) * b
```

```python
import re

REG_RE = re.compile(r'^(-?)(?:abs\()?([vas])(?:(\d+)|\[(\d+):(\d+)\])\)?$')

def regs_of(op):
    op = op.strip()
    if op in ('vcc', 'vcc_lo', 'vcc_hi'): return {('s', 'vcc')}
    if op in ('exec', 'exec_lo', 'exec_hi'): return {('s', 'exec')}
    if op == 'm0': return {('s', 'm0')}
    m = REG_RE.match(op)
    if not m: return set()
    k = m.group(2)
    if m.group(3) is not None: return {(k, int(m.group(3)))}
    return {(k, i) for i in range(int(m.group(4)), int(m.group(5)) + 1)}

def split_ops(s):
    out, depth, cur = [], 0, ''
    for ch in s:
        if ch == '[' or ch == '(': depth += 1
        if ch == ']' or ch == ')': depth -= 1
        if ch == ',' and depth == 0:
            out.append(cur.strip()); cur = ''
        else: cur += ch
    if cur.strip(): out.append(cur.strip())
    return out

TRANS = ('v_exp_', 'v_log_', 'v_rcp_', 'v_rsq_', 'v_sqrt_', 'v_sin_', 'v_cos_')

class Ins:
    def __init__(s, text):
        s.text = text
        t = text.split(';')[0].strip()
        parts = t.split(None, 1)
        s.mn = mn = parts[0]
        rest = parts[1] if len(parts) > 1 else ''
        ops = split_ops(rest)
        mods = ''
        if ops:
            lp = ops[-1].split(None, 1)
            ops[-1] = lp[0]
            mods = lp[1] if len(lp) > 1 else ''
        s.ops = ops; s.mods = mods
        s.mfma = mn.startswith('v_mfma')
        s.valu = mn.startswith('v_') and not s.mfma
        s.dot = mn.startswith('v_dot')
        s.trans = mn.startswith(TRANS)
        s.vmem = mn.startswith(('buffer_', 'global_'))
        s.ds = mn.startswith('ds_')
        s.salu = mn.startswith('s_')
        s.dpp = '_dpp' in mn
        s.perml = mn.startswith('v_permlane')
        s.rdlane = mn.startswith(('v_readlane', 'v_readfirstlane'))
        s.w = set(); s.r = set(); s.ab = set(); s.c = set(); s.data = set()
        R = [regs_of(o) for o in ops]
        s.states = 1
        if mn == 's_nop': s.states = int(ops[0], 0) + 1
        if s.mfma:
            s.w = R[0]; s.ab = R[1] | R[2]; s.c = R[3]; s.r = s.ab | s.c
        elif s.valu:
            if s.perml: s.w = R[0] | R[1]; s.r = R[0] | R[1]
            else:
                s.w = set(R[0])
                for x in R[1:]: s.r |= x
                if mn.startswith(('v_add_co', 'v_addc_co', 'v_sub_co')): s.w |= R[1]
                if mn.startswith(('v_fmac', 'v_dot2c')) or s.dpp: s.r |= R[0]
                if mn.startswith('v_cmp'): pass
        elif s.vmem:
            isst = ('store' in mn) or ('atomic' in mn)
            if mn.startswith('buffer_'):
                if isst: s.data = R[0]; s.r |= R[0]
                else: s.w = R[0]
                for x in R[1:]: s.r |= x
            else:
                if isst:
                    s.data = R[1]
                    for x in R: s.r |= x
                else:
                    s.w = R[0]
                    for x in R[1:]: s.r |= x
            s.wide = isst and ('x3' in mn or 'x4' in mn)
        elif s.ds:
            if 'read' in mn or 'bpermute' in mn or 'swizzle' in mn:
                s.w = R[0]
                for x in R[1:]: s.r |= x
            else:
                for x in R: s.r |= x
        elif s.salu:
            if mn.startswith(('s_cmp', 's_cbranch', 's_branch', 's_waitcnt', 's_nop', 's_barrier', 's_endpgm', 's_setprio', 's_sleep')):
                for x in R: s.r |= x
            else:
                if R: s.w = R[0]
                for x in R[1:]: s.r |= x
                if 'saveexec' in mn: s.w = s.w | {('s', 'exec')}

def isv(x): return x[0] in 'va'

def need(p, c):
    n = 0
    pv = {x for x in p.w if isv(x)}
    ps = {x for x in p.w if x[0] == 's'}
    if p.valu:
        if c.dpp and (pv & c.r): n = max(n, 2)
        if c.rdlane and (pv & c.r): n = max(n, 1)
        if c.perml and (pv & c.r): n = max(n, 2)
        if c.mfma and (pv & c.r): n = max(n, 2)
        if p.trans and c.valu and (pv & c.r): n = max(n, 1)
        if p.dot and (c.valu or c.mfma or c.vmem or c.ds):
            if c.mn == p.mn:
                srcab = set()
                for o in c.ops[1:3]: srcab |= regs_of(o)
                if pv & srcab: n = max(n, 3)
            elif pv & (c.r | c.w): n = max(n, 3)
        if ps:
            if c.valu and (ps & c.r): n = max(n, 4 if c.rdlane else 2)
            if c.vmem and (ps & c.r): n = max(n, 5)
            if c.salu and (ps & c.r): n = max(n, 1)
            if ('s', 'exec') in ps and (c.dpp): n = max(n, 5)
            if c.valu and c.mn.startswith('v_cndmask') and ('s', 'vcc') in ps and len(c.ops) == 3: n = max(n, 2)
            if c.mn.startswith('s_cbranch_vcc') and ('s', 'vcc') in ps: n = max(n, 1)
    if p.mfma:
        passes4 = True
        if c.mfma:
            if pv & c.ab: n = max(n, 8)
            if (pv & c.c) and c.c != pv: n = max(n, 6)
        elif (c.valu or c.vmem or c.ds) and (pv & (c.r | c.w)): n = max(n, 8)
        if c.valu and (p.c & c.w): n = max(n, 3)
    if p.vmem and getattr(p, 'wide', False) and (p.data & c.w): n = max(n, 2)
    if p.salu and ('s', 'm0') in p.w and (c.vmem and 'lds' in c.mods): n = max(n, 1)
    return n

class Gen:
    def __init__(s):
        s.lines = []; s.hist = []
        s.issued = []; s.done = 0
    def raw(s, text): s.lines.append(text)
    def label(s, name):
        s.lines.append(name + ':');
    def __call__(s, text):
        for t in text.strip().split('\n'):
            t = t.strip()
            if not t or t.startswith(';'): continue
            ins = Ins(t)
            dist = 0; pad = 0
            for p in reversed(s.hist[-24:]):
                req = need(p, ins)
                if req > dist: pad = max(pad, req - dist)
                dist += p.states
                if dist >= 12: break
            while pad > 0:
                k = min(pad, 16)
                nop = Ins(f's_nop {k-1}'); s.hist.append(nop); s.lines.append('    ' + nop.text); pad -= k
            s.hist.append(ins); s.lines.append('    ' + t)
    def vm(s, text, tag):
        s(text); s.issued.append(tag)
    def wait(s, tag):
        i = s.issued.index(tag)
        if i < s.done: return
        n = len(s.issued) - 1 - i
        assert n <= 63, (tag, n)
        s(f's_waitcnt vmcnt({n})'); s.done = i + 1
    def outstanding(s): return len(s.issued) - s.done
    def text(s): return '\n'.join(s.lines) + '\n'
```

```python
import sys, math, struct
from asmgen import Gen
NAME = "gated_mix__mha_block_cached__geglu_ffn__decode"

def f2u(x): return struct.unpack('<I', struct.pack('<f', x))[0]

def gen(fname, nt_kv="nt", nt_w="", nt_p="nt", W0=15, W=16, WK=16, WV=20, stamps=False, GQ=44, WO_START=2, WO_STEP=1.55,
        FFPOS=4, MLPOS=44, spin_max=1 << 20, abl="", dbgt=0, pfc=0, touch=0, LATE=0, WDLATE=0, dry=0, spindiag=0, KF=4, outsc="", POLLR=4, POLLTH=64, newpoll=1, ysc="sc1", lsc="sc1", yat=0, MLW=8, pub1=1, ydense=2, bias=1, meas=None, FGPOS=60, TR=0, wstamps=0, PM="W", mimic=1, RS=288, GRP=0, PAT=0, psc="sc1", qspread=1, JB=8, SL=0, xmap=0, PF=0):
    g = Gen(); A = g
    drop = []
    for ch, tags in (('o', ["wo"]), ('p', ["pc"]), ('G', ["gq"]), ('F', ["fg"]), ('M', ["mlld"]), ('N', ["mlpub"]), ('P', ["pub"]), ('y', ["ypub"]), ('d', ["wd", "xg", "gw"])):
        if ch in abl: drop += tags
    dropped = set()
    _vm = g.vm; _wait = g.wait
    def vm2(text, tag):
        if any(tag.startswith(d) for d in drop): dropped.add(tag); return
        _vm(text, tag)
    def wait2(tag):
        if tag not in dropped: _wait(tag)
    g.vm = vm2; g.wait = wait2
    def barrier(): A("s_barrier" if "b" not in abl else "s_nop 0")
    NK = 48
    ntkv = (" " + nt_kv) if nt_kv else ""
    ntw = (" " + nt_w) if nt_w else ""
    ntp = (" " + nt_p) if nt_p else ""
    for line in """; out = g*(softmax(q K^T) V Wo) + (1-g)*GEGLU(x), B=2, H=32, Sk=4096, Dh=128, D=512, F=1376.  One launch.
; 256 workgroups (one per CU) x 4 waves; workgroup = (b, h, quarter of the keys); wave = 256 keys.
;  1. x-projections (Wq, Wgate, Wup) are cut into 32 KiB pieces, one per workgroup; the partial sums are
;     handed over through d_ws while the K stream is already being buffered in registers.
;  2. K phase: v_dot2 + DPP reduce -> scores, per-wave true max, p = exp(s - max) in bf16.
;  3. V phase: MFMA with a diagonal A operand built from p; (max, sum) of the four key quarters are
;     exchanged through d_ws so that every workgroup normalises its own partial output.
;  4. o @ Wo[h] (Wo transposed through LDS beforehand) + its 12 rows of h @ Wdown -> 512 partial outputs,
;     published in d_ws; 256 waves add up 128 partials each and store the bf16 result.
; Hand-offs carry a tag derived from an epoch word in d_ws (advanced once per launch), so words left by
; an earlier launch are never taken for this launch's; the tag bits are removed before any value is used.
; Kernarg (ptrs): 0 x, 8 K, 16 V, 24 Wq, 32 Wo, 40 B_x (unused), 48 Wgate, 56 Wup, 64 Wdown, 72 gate_w,
;                 80 out, 88 debug (unused), 96 ws""".split("\n"): g.raw(line)
    g.raw("; @launch grid=(256,1,1) block=(256,1,1) lds=49152")
    g.raw('.amdgcn_target "amdgcn-amd-amdhsa--gfx950"')
    g.raw(".text"); g.raw(f".globl {NAME}_kernel"); g.raw(".p2align 8"); g.raw(f".type {NAME}_kernel,@function"); g.raw(f"{NAME}_kernel:")
    sX, sK, sV, sP, sWO, sWD, sGW, sOUT, sWS = [f"s[{i}:{i+3}]" for i in range(4, 40, 4)]
    sOFFK = "s3"
    sSLOT, sMLA, sPI, sSTR, sSELLO, sSELHI, sUPOFF, sROLE, sMASK = "s40", "s41", "s42", "s43", "s44", "s45", "s46", "s47", "s48"
    sLOW = "s89"; sMASK12 = "s88"; sPSLOT = "s49"; sFFN = "s46"; sKQ = "s51"
    sH, sB, sSP, sBH, sCB, sT0, sT1, sOFF = "s52", "s53", "s54", "s55", "s56", "s57", "s58", "s59"
    sM, sSPIN = "s60", "s61"
    sVM = "s[62:63]"
    stamp_regs = [90, 92, 94, 96, 98, 100, 50]
    nstamp = [0]
    def stamp(name="*"):
        if meas and name == meas[0]: A("s_memrealtime s[94:95]")
        if stamps and (name in str(stamps) or name == "*"):
            r = stamp_regs[nstamp[0]]; nstamp[0] += 1
            A(f"s_memrealtime s[{r}:{r+1}]")
    YBASE, MLBASE, EPOCH, QP, WSSZ, OOB = 0, 0x18000, 0x20000, 0x10000, 0x280000, 0x40000000
    L_S1, L_O, L_F, L_T, L_ML = 0, 4096, 5632, 8192, 7936
    vKV, vPC, vWO, vFG_A, vWD, vY, vML, vMLR, vLDS = 1, 2, 3, 4, 5, 6, 7, 8, 9
    vT8 = 10
    vXE, vXO = 12, 13
    vOMG = 14
    vFG_B = 43
    vMW, vL, vE = 16, 17, 18
    vG, vF = 11, 15
    vM = [20, 21, 22, 23]
    vQ = [24, 25, 26, 27]
    vA = [28, 32]
    vD, vD2 = 36, 40
    vT = list(range(44, 48))
    vS = 48
    vK0 = 64
    def kslot(i): return vK0 + 4 * i
    def R4(b): return f"v[{b}:{b+3}]"
    def R2(b): return f"v[{b}:{b+1}]"
    def A4(b): return f"a[{b}:{b+3}]"
    t0, t1, t2, t3 = [f"v{i}" for i in vT]
    AK, AP = 160, 224

    A(f"s_lshr_b32 {sOFFK}, s2, 8")
    A("s_cbranch_scc1 L_end")
    A("s_load_dwordx2 s[8:9], s[0:1], 8")
    stamp()
    if meas: A("s_memrealtime s[92:93]")
    A(f"s_bfe_u32 {sT0}, s2, 0x40003")
    A(f"s_and_b32 {sT1}, s2, 7")
    A(f"s_lshl4_add_u32 {sCB}, {sT1}, {sT0}")
    A(f"s_and_b32 {sOFF}, s2, 0x80")
    A(f"s_add_u32 {sOFF}, {sOFF}, {sCB}")
    A(f"v_lshlrev_b32 v{vKV}, 4, v0")
    A(f"v_and_b32 {t0}, 0xc0, v0")
    A(f"v_mad_u32_u24 v{vKV}, {t0}, 48, v{vKV}")
    A(f"s_lshl_b32 s10, 1, 26")
    A(f"v_lshl_add_u32 v{vKV}, {sOFF}, 18, v{vKV}")
    A("s_mov_b32 s11, 0x20000")
    cur_off = [None]
    def setoff(v):
        if cur_off[0] != v:
            A(f"s_mov_b32 {sOFFK}, {v}"); cur_off[0] = v
    def ld_k(j):
        def f():
            setoff((j // 4) * 16384)
            dst = R4(kslot(j)) if j < NK else A4(AK + 4 * (j - NK))
            g.vm(f"buffer_load_dwordx4 {dst}, v{vKV}, {sK}, {sOFFK} offen offset:{(j%4)*1024}{ntkv}", f"k{j}")
        return (None, f)
    cur_off[0] = 0
    def piece_setup():
        A("s_load_dwordx16 s[64:79], s[0:1], 0")
        A("s_load_dwordx8 s[80:87], s[0:1], 64")
        A("s_load_dwordx2 s[36:37], s[0:1], 96")
        A(f"s_lshr_b32 {sH}, {sCB}, 2")
        A(f"s_and_b32 {sSP}, {sCB}, 3")
        A(f"s_lshr_b32 {sB}, s2, 7")
        A(f"s_lshr_b32 {sBH}, {sOFF}, 2")
        for r, sz in ((6, 2048), (38, WSSZ)): A(f"s_mov_b32 s{r}, {sz}")
        for r in (7, 19, 39): A(f"s_mov_b32 s{r}, 0x20000")
        if bias:
            A(f"s_and_b32 {sFFN}, s2, 1")
            A(f"s_bfe_u32 {sT0}, s2, 0x20001")
            A(f"s_lshr_b32 {sT1}, s2, 3")
            A(f"s_mul_i32 {sPSLOT}, {sT0}, 22")
            A(f"s_lshl_b32 {sT0}, {sT0}, 5")
            A(f"s_cmp_eq_u32 {sFFN}, 0")
            A(f"s_cselect_b32 {sPSLOT}, {sT0}, {sPSLOT}")
            A(f"s_add_u32 {sPSLOT}, {sPSLOT}, {sT1}")
            A(f"s_cmp_lt_u32 {sT1}, 22")
            A(f"s_cselect_b32 s18, {512*2752}, 0")
            A(f"s_lshr_b32 {sPI}, {sPSLOT}, 2")
            A(f"s_and_b32 {sKQ}, {sPSLOT}, 3")
            A(f"s_lshl_b32 {sT1}, {sFFN}, 7")
            A(f"s_add_u32 {sPSLOT}, {sPSLOT}, {sT1}")
            A(f"s_cmp_ge_u32 {sPI}, 11")
            A(f"s_cselect_b32 {sT0}, 11, 0")
            A(f"s_sub_u32 {sT0}, {sPI}, {sT0}")
            A(f"s_mov_b32 {sSTR}, 2752")
            A(f"s_cmp_eq_u32 {sFFN}, 0")
            A(f"s_cselect_b32 s18, {4<<20}, s18")
            A(f"s_cselect_b32 {sSTR}, 8192, {sSTR}")
            A(f"s_cselect_b32 {sT0}, {sPI}, {sT0}")
        else:
            A(f"s_lshl3_add_u32 {sPI}, {sT1}, {sT0}")
            A(f"s_mov_b32 {sFFN}, {sB}")
            A(f"s_mov_b32 {sKQ}, {sSP}")
            A(f"s_cmp_lt_u32 {sPI}, 22")
            A(f"s_cselect_b32 s18, {512*2752}, 0")
            A(f"s_cmp_ge_u32 {sPI}, 11")
            A(f"s_cselect_b32 {sT0}, 11, 0")
            A(f"s_sub_u32 {sT0}, {sPI}, {sT0}")
            A(f"s_lshl2_add_u32 {sPSLOT}, {sPI}, {sSP}")
            A(f"s_add_u32 {sPSLOT}, {sPSLOT}, 128")
            A(f"s_mov_b32 {sSTR}, 2752")
            A(f"s_cmp_eq_u32 {sB}, 0")
            A(f"s_cselect_b32 s18, {4<<20}, s18")
            A(f"s_cselect_b32 {sSTR}, 8192, {sSTR}")
            A(f"s_cselect_b32 {sT0}, {sH}, {sT0}")
            A(f"s_cselect_b32 {sPSLOT}, {sCB}, {sPSLOT}")
        A(f"s_lshl_b32 {sT0}, {sT0}, 8")
        A(f"v_and_b32 {t2}, 15, v0")
        A(f"v_lshrrev_b32 v{vF}, 4, v0")
        A(f"v_lshlrev_b32 v{vF}, 3, v{vF}")
        A(f"s_lshl_b32 {sT1}, {sKQ}, 7")
        A(f"v_add_u32 v{vF}, {sT1}, v{vF}")
        A(f"v_mul_u32_u24 v{vPC}, {sSTR}, v{vF}")
        A(f"v_lshl_add_u32 v{vPC}, {t2}, 4, v{vPC}")
        A(f"v_add_u32 v{vPC}, {sT0}, v{vPC}")
        A(f"v_bfe_u32 v{vG}, v0, 3, 1")
        A(f"v_lshlrev_b32 v{vG}, 10, v{vG}")
        A(f"v_lshl_add_u32 v{vG}, v{vF}, 1, v{vG}")
        A(f"s_mov_b32 {sOFF}, {EPOCH}")
    A("s_waitcnt lgkmcnt(0)")
    stamp("a")
    for j in range(KF): ld_k(j)[1]()
    piece_setup()
    A("s_waitcnt lgkmcnt(0)")
    g.vm(f"buffer_load_dwordx2 {R2(vE)}, off, {sWS}, {sOFF} sc1", "ep")
    A(f"s_cmp_ge_u32 {sPI}, 11")
    A("s_cselect_b32 s16, s78, s76"); A("s_cselect_b32 s17, s79, s77")
    A(f"s_cmp_eq_u32 {sFFN}, 0")
    A("s_cselect_b32 s16, s70, s16"); A("s_cselect_b32 s17, s71, s17")
    A("s_mov_b32 s4, s64"); A("s_mov_b32 s5, s65")
    g.vm(f"buffer_load_dwordx4 {R4(vQ[0])}, v{vG}, {sX}, 0 offen", "x")
    for j in range(8):
        if j == 0: so = "0"
        elif j == 1: so = sSTR
        elif j == 2: A(f"s_lshl_b32 {sOFF}, {sSTR}, 1"); so = sOFF
        else: A(f"s_add_u32 {sOFF}, {sOFF}, {sSTR}"); so = sOFF
        g.vm(f"buffer_load_dwordx4 {A4(AP+4*j)}, v{vPC}, {sP}, {so} offen{ntp}", f"pc{j}")
    if PF:
        A("s_getpc_b64 s[50:51]") if not bias else A("s_getpc_b64 s[62:63]")
        g.label("L_pc")
        A(f"s_lshr_b32 {sT0}, s2, 3")
        A(f"s_mul_i32 {sT0}, {sT0}, {PF*512}")
        A(f"v_lshrrev_b32 v{vY}, 6, v0")
        A(f"v_mul_u32_u24 v{vY}, {PF*128}, v{vY}")
        A(f"v_and_b32 v{vML}, 63, v0")
        A(f"v_lshl_add_u32 v{vY}, v{vML}, 4, v{vY}")
        A(f"v_add_u32 v{vY}, {sT0}, v{vY}")
        A(f"v_min_u32 v{vY}, L_end-L_pc-16, v{vY}")
        A(f"s_mov_b64 exec, {(1 << (8*PF)) - 1}")
        g.vm(f"global_load_dwordx4 {R4(kslot(47))}, v{vY}, s[62:63]", "pf")
        A("s_mov_b64 exec, -1")
    stamp("i")
    if touch:
        for d, s_ in ((12, 68), (20, 72), (24, 80), (28, 82)):
            A(f"s_mov_b32 s{d}, s{s_}"); A(f"s_mov_b32 s{d+1}, s{s_+1}")
        for r, sz in ((14, 64 << 20), (22, 4 << 20), (26, 1376 * 1024), (30, 1024)): A(f"s_mov_b32 s{r}, {sz}")
        for r in (15, 23, 27, 31): A(f"s_mov_b32 s{r}, 0x20000")
        A(f"v_and_b32 v{vY}, 0xfffff000, v{vKV}")
        g.vm(f"buffer_load_dword v{kslot(43)}, v{vY}, {sV}, 0 offen{ntkv}", "tv")
        A(f"s_lshl_b32 {sOFF}, {sH}, 17")
        g.vm(f"buffer_load_dword v{kslot(43)+1}, off, {sWO}, {sOFF}", "two")
        g.vm(f"buffer_load_dword v{kslot(43)+2}, off, {sWD}, 0", "twd")
        g.vm(f"buffer_load_dword v{kslot(43)+3}, off, {sGW}, 0", "tgw")
    events = set(); seq = []
    def ld_v(j):
        pre = None
        if 4 * j >= AP: pre = "s1done"
        elif 4 * j >= AK: pre = f"kg{(NK + (4*j - AK)//4)//4}"
        def f():
            setoff((j // 4) * 16384)
            g.vm(f"buffer_load_dwordx4 {A4(4*j)}, v{vKV}, {sV}, {sOFFK} offen offset:{(j%4)*1024}{ntkv}", f"v{j}")
        return (pre, f)
    WO0 = 16
    def ld_wo(j):
        slot = WO0 + j
        def f():
            A(f"s_mov_b32 {sOFF}, {j * 4096}")
            g.vm(f"buffer_load_dwordx4 {R4(kslot(slot))}, v{vWO}, {sWO}, {sOFF} offen{ntw}", f"wo{j}")
        return (f"kg{slot//4}", f)
    def ld_wd(t):
        def f(): g.vm(f"buffer_load_dwordx4 {R4(kslot(t))}, v{vWD}, {sWD}, 0 offen offset:{t*1024}{ntw}", f"wd{t}")
        return ("kg0", f)
    vFG = vXE; vXG = kslot(6); vMLm = kslot(9); fa = kslot(10)
    tq = [vS, vS + 4, vS + 8, vS + 12, vA[0], vA[1], vD, vD2]
    def gq_loads(emit):
        for hf in range(2):
            emit(f"buffer_load_dwordx4 {R4(vS+4*hf)}, v{vPC}, {sWS}, 0 offen offset:{hf*256} sc1", f"gq{hf}")
    def fg_loads(emit):
        emit(f"buffer_load_dword v{vFG}, v{vFG_A}, {sWS}, 0 offen sc1", "fg0")
        emit(f"buffer_load_dword v{vFG+1}, v{vFG_B}, {sWS}, 0 offen sc1", "fg1")
    def ml_loads(emit): emit(f"buffer_load_dwordx4 {R4(vMLm)}, v{vMLR}, {sWS}, 0 offen sc1", "mlld")
    def ld_gate():
        def f():
            A(f"v_and_b32 v{fa}, 63, v0")
            A(f"v_lshlrev_b32 v{fa}, 4, v{fa}")
            A(f"s_lshl_b32 {sOFF}, {sB}, 10")
            g.vm(f"buffer_load_dwordx4 {R4(vXG)}, v{fa}, {sX}, {sOFF} offen", "xg")
            g.vm(f"buffer_load_dwordx4 {R4(vXG+4)}, v{fa}, {sGW}, 0 offen", "gw")
        return ("kg2", f)
    def once(pre, loads):
        def f(): loads(g.vm)
        return (pre, f)
    for j in range(KF, 64):
        seq.append(ld_k(j))
        if j == GQ:
            seq.append(once("pub", gq_loads))
            if FGPOS < 0: seq.append(once("pub", fg_loads))
        if j == FGPOS: seq.append(once("pub", fg_loads))
    wo_pos = {}
    if LATE: WO_STEP = (58.0 - WO_START) / (32 - LATE)
    for j in range(32): wo_pos.setdefault(int(WO_STEP * j) + WO_START if j < 32 - LATE else 63, []).append(j)
    for j in range(64):
        seq.append(ld_v(j))
        for w_ in wo_pos.get(j, []): seq.append(ld_wo(w_))
        if j == FFPOS:
            seq.append(ld_gate())
            if not WDLATE:
                for t in range(4): seq.append(ld_wd(t))
        if j == 63 and WDLATE:
            for t in range(4): seq.append(ld_wd(t))
        if j == MLPOS: seq.append(once("mlpub", ml_loads))
    pos = [0]
    def pump(win):
        while pos[0] < len(seq):
            pre, f = seq[pos[0]]
            if pre is not None and pre not in events: break
            if g.outstanding() >= win: break
            pos[0] += 1
            f()
    class Trickle:
        def __init__(s_, on): s_.on = on
        def __enter__(s_):
            if TR and s_.on:
                s_.cnt = 0; s_.orig = Gen.__call__
                me = s_
                def call(self, text):
                    me.orig(self, text)
                    if me.busy: return
                    me.cnt += 1
                    if me.cnt % TR == 0 and g.outstanding() < 56 and not text.startswith(("v_cmp", "s_")):
                        me.busy = True; pump(g.outstanding() + 1); me.busy = False
                s_.busy = False
                Gen.__call__ = call
            return s_
        def __exit__(s_, *a):
            if TR and s_.on: Gen.__call__ = s_.orig
    def known(tag): return tag in dropped or (tag in g.issued and g.issued.index(tag) < g.done)
    def buildA(aset, src, lane):
        for m in range(4):
            A(f"v_and_b32_dpp v{vA[aset]+m}, v{src}, v{vM[m]} row_newbcast:{lane} row_mask:0xf bank_mask:0xf")
    def spin(label, loads, test):
        if {"L_gq": "G", "L_fg": "F", "L_ml": "M"}.get(label, "?") in abl:
            g.label(f"{label}_ok"); A("s_nop 4"); return
        A(f"s_mov_b32 {sSPIN}, {spin_max}" if not dry else f"s_mov_b32 {sSPIN}, s50")
        g.label(f"{label}_spin")
        A("s_nop 4")
        loads(lambda text, tag: A(text))
        A("s_waitcnt vmcnt(0)")
        test(f"{label}_ok")
        A(f"s_sub_u32 {sSPIN}, {sSPIN}, 1")
        A(f"s_cmp_lg_u32 {sSPIN}, 0")
        A(f"s_cbranch_scc1 {label}_spin")
        g.label(f"{label}_ok")
        A("s_nop 4")
        if spindiag == 1:
            A(f"s_cmp_lg_u32 {sSPIN}, 0")
            A(f"s_cselect_b32 {sSPIN}, {(dict(L_gq=100, L_fg=1000, L_ml=10000) if not meas else dict(L_gq=1000, L_fg=2000, L_ml=4000))[label]}, 0")
            A(f"s_add_u32 s88, s88, {sSPIN}")
            A(f"s_mov_b32 {sSPIN}, 0")

    if spindiag:
        A("s_mov_b32 s88, 0"); A(f"s_mov_b32 {sSPIN}, 0")
    pump(W0)
    for r, sz in ((14, 64 << 20), (22, 4 << 20), (26, 1376 * 1024), (30, 1024), (34, 2048)): A(f"s_mov_b32 s{r}, {sz}")
    for r in (15, 23, 27, 31, 35): A(f"s_mov_b32 s{r}, 0x20000")
    A(f"v_and_b32 {t0}, 63, v0")
    A(f"v_lshrrev_b32 {t1}, 6, v0")
    A(f"v_bfe_u32 {t3}, v0, 4, 2")
    A(f"v_readfirstlane_b32 {sROLE}, v0")
    for d, s_ in ((12, 68), (20, 72), (24, 80), (28, 82), (32, 84)):
        A(f"s_mov_b32 s{d}, s{s_}"); A(f"s_mov_b32 s{d+1}, s{s_+1}")
    A(f"v_and_b32 v{vF}, 1, v0")
    A(f"v_cmp_eq_u32 vcc, 1, v{vF}")
    A(f"v_mov_b32 v{vF}, 0xffff")
    A(f"v_mov_b32 v{vG}, 0xffff0000")
    A(f"v_cndmask_b32 v{vF}, v{vF}, v{vG}, vcc")
    A(f"v_bfe_u32 v{vG}, v0, 1, 2")
    for m in range(4):
        A(f"v_cmp_eq_u32 vcc, {m}, v{vG}")
        A(f"v_cndmask_b32 v{vM[m]}, 0, v{vF}, vcc")
    A(f"s_mov_b32 {sSELLO}, 0x01000100"); A(f"s_mov_b32 {sSELHI}, 0x03020302")
    A(f"s_mov_b32 {sMASK}, 0xffffff00"); A(f"s_mov_b32 {sLOW}, 0xfff"); A(f"s_mov_b32 {sMASK12}, 0xfffff000")
    A(f"s_lshl_b32 {sSLOT}, {sB}, 7"); A(f"s_add_u32 {sSLOT}, {sSLOT}, {sCB}")
    if ydense == 2:
        A(f"s_lshr_b32 {sT0}, {sSLOT}, 5"); A(f"s_lshl_b32 {sT0}, {sT0}, 18")
        A(f"s_and_b32 {sSLOT}, {sSLOT}, 31"); A(f"s_lshl_b32 {sSLOT}, {sSLOT}, 11"); A(f"s_add_u32 {sSLOT}, {sSLOT}, {sT0}")
    elif ydense:
        A(f"s_lshl_b32 {sSLOT}, {sSLOT}, 11"); A(f"s_add_u32 {sSLOT}, {sSLOT}, 0x200000")
    else:
        A(f"s_and_b32 {sT0}, {sSLOT}, 7"); A(f"s_lshl_b32 {sT0}, {sT0}, 18")
        A(f"s_lshr_b32 {sSLOT}, {sSLOT}, 3"); A(f"s_lshl_b32 {sSLOT}, {sSLOT}, 11"); A(f"s_add_u32 {sSLOT}, {sSLOT}, {sT0}")
    A(f"s_and_b32 {sT0}, {sBH}, 1"); A(f"s_lshl_b32 {sT0}, {sT0}, 20")
    A(f"s_lshr_b32 {sMLA}, {sBH}, 1"); A(f"s_lshl_b32 {sMLA}, {sMLA}, 7")
    A(f"s_add_u32 {sMLA}, {sMLA}, {sT0}"); A(f"s_add_u32 {sMLA}, {sMLA}, {MLBASE}")
    A(f"v_mov_b32 v{vML}, {OOB}")
    A(f"v_lshlrev_b32 v{vY}, 3, v0")
    A(f"v_add_u32 v{vY}, {sSLOT}, v{vY}")
    A(f"v_mul_u32_u24 v{vLDS}, 320, {t1}")
    A(f"v_lshl_add_u32 v{vLDS}, {t2}, 4, v{vLDS}")
    A(f"v_lshl_add_u32 v{vLDS}, {t3}, 3, v{vLDS}")
    A(f"v_and_b32 v{vMLR}, 3, v0")
    A(f"v_lshlrev_b32 v{vMLR}, 18, v{vMLR}")
    A(f"v_add_u32 v{vMLR}, {sMLA}, v{vMLR}")
    A(f"v_lshlrev_b32 v{vWD}, 8, {t1}")
    A(f"v_lshl_add_u32 v{vWD}, {t2}, 4, v{vWD}")
    A(f"v_lshl_add_u32 v{vWO}, {t3}, 10, v{vWD}")
    A(f"s_lshl_b32 {sOFF}, {sH}, 17")
    A(f"v_add_u32 v{vWO}, {sOFF}, v{vWO}")
    A(f"v_lshl_add_u32 v{vWD}, {t3}, 12, v{vWD}")
    A(f"s_mul_i32 {sOFF}, {sCB}, {12*1024}")
    A(f"v_add_u32 v{vWD}, {sOFF}, v{vWD}")
    A(f"v_cmp_gt_u32 {sVM}, 3, {t3}")
    A(f"v_cndmask_b32 v{vWD}, v{vML}, v{vWD}, {sVM}")
    A(f"v_and_b32 v{vF}, 3, v0")
    A(f"v_lshl_add_u32 v{vF}, {t3}, 2, v{vF}")
    A(f"s_mul_i32 {sT0}, {sCB}, 12")
    A(f"v_add_u32 v{vF}, {sT0}, v{vF}")
    A(f"v_mov_b32 v{vG}, 1376")
    A(f"v_cmp_lt_u32 vcc, v{vF}, v{vG}")
    A(f"s_and_b64 {sVM}, {sVM}, vcc")
    def pos_add(dst, col, tmp):
        A(f"v_bfe_u32 v{tmp}, v{col}, 2, 1")
        A(f"v_lshl_add_u32 v{dst}, v{tmp}, 8, v{dst}")
        A(f"v_bfe_u32 v{tmp}, v{col}, 3, 4")
        A(f"v_lshl_add_u32 v{dst}, v{tmp}, 4, v{dst}")
        A(f"v_and_b32 v{tmp}, 3, v{col}")
        A(f"v_lshl_add_u32 v{dst}, v{tmp}, 2, v{dst}")
    A(f"v_bfe_u32 v{vD}, v0, 2, 2")
    A(f"v_lshlrev_b32 v{vD}, 18, v{vD}")
    pos_add(vD, vF, vG)
    A(f"s_lshl_b32 {sT0}, {sB}, 9")
    A(f"s_add_u32 {sT0}, {sT0}, {QP + 16*1024}")
    A(f"v_add_u32 v{vD}, {sT0}, v{vD}")
    A(f"v_lshrrev_b32 v{vF}, 7, v{vF}")
    for m_, dst in ((0, vFG_A), (1, vFG_B)):
        if m_: A(f"v_add_u32 v{vF}, 11, v{vF}")
        A(f"v_and_b32 v{vG}, 1, v{vF}")
        A(f"v_lshl_add_u32 v{dst}, v{vG}, 20, v{vD}")
        A(f"v_lshrrev_b32 v{vG}, 1, v{vF}")
        A(f"v_lshl_add_u32 v{dst}, v{vG}, 10, v{dst}")
        A(f"v_cndmask_b32 v{dst}, v{vML}, v{dst}, {sVM}")
    A(f"s_and_b32 {sT0}, {sPSLOT}, 7"); A(f"s_lshl_b32 {sT0}, {sT0}, 18")
    A(f"s_lshr_b32 {sT1}, {sPSLOT}, 3"); A(f"s_lshl_b32 {sT1}, {sT1}, 10")
    A(f"s_add_u32 {sT0}, {sT0}, {sT1}")
    A(f"s_add_u32 {sT0}, {sT0}, {QP}")
    A(f"s_cmp_eq_u32 s18, 0")
    A(f"s_cselect_b32 {sT0}, {OOB}, {sT0}")
    if pub1:
        A(f"v_lshlrev_b32 v{vXO}, 4, {t0}")
        A(f"v_add_u32 v{vXO}, {sT0}, v{vXO}")
    else:
        A(f"v_lshlrev_b32 v{vXE}, 2, v0")
        A(f"v_lshrrev_b32 v{vXO}, 7, v0")
        A(f"v_lshlrev_b32 v{vXO}, 9, v{vXO}")
        pos_add(vXO, 0, vG)
        A(f"v_add_u32 v{vXO}, {sT0}, v{vXO}")
    A(f"s_lshl_b32 {sT0}, {sSP}, 18"); A(f"s_add_u32 {sT0}, {sT0}, {sMLA}")
    A(f"v_lshl_add_u32 v{vF}, {t0}, 4, {sT0}")
    A(f"v_cmp_gt_u32 vcc, {MLW}, {t0}")
    A(f"v_cndmask_b32 v{vML}, v{vML}, v{vF}, vcc")
    A(f"s_lshl_b32 {sT0}, {sSP}, 8")
    A(f"s_or_b32 {sROLE}, {sROLE}, {sT0}")
    A(f"v_lshrrev_b32 v{vF}, 5, v0")
    A(f"v_lshlrev_b32 v{vF}, 9, v{vF}")
    A(f"v_lshl_add_u32 v{vF}, {t2}, 5, v{vF}")
    A(f"v_bfe_u32 v{vG}, v0, 4, 1")
    A(f"v_lshl_add_u32 v{vF}, v{vG}, 4, v{vF}")
    g.wait("x")
    stamp("x")
    if dbgt: A("s_memrealtime s[98:99]")
    A(f"v_add_u32 v{vE}, 0x9e3779b9, v{vE}")
    A(f"v_xor_b32 v{vE+1}, 0x7f4a7c15, v{vE+1}")
    A(f"v_and_b32 v{vT8}, 0xff, v{vE}")
    for j in range(8):
        A(f"v_perm_b32 v{vS+j}, v{vQ[j//2]}, v{vQ[j//2]}, {sSELHI if j % 2 else sSELLO}")
    def buildP(j):
        for m in range(4): A(f"v_and_b32 v{vA[j%2]+m}, v{vS+j}, v{vM[m]}")
    buildP(0)
    for j in range(8):
        g.wait(f"pc{j}")
        A(f"v_mfma_f32_16x16x32_bf16 {R4(vD)}, {R4(vA[j%2])}, {A4(AP+4*j)}, {'0' if j == 0 else R4(vD)}")
        if j < 7: buildP(j + 1)
        pump(W0)
    events.add("s1done")
    stamp("f")
    A(f"s_and_b32 {sT0}, {sH}, 1"); A(f"s_lshl_b32 {sT0}, {sT0}, 20")
    A(f"s_lshr_b32 {sT1}, {sH}, 1"); A(f"s_lshl_b32 {sT1}, {sT1}, 10")
    A(f"s_add_u32 {sT0}, {sT0}, {sT1}")
    A(f"s_lshl_b32 {sT1}, {sB}, 9")
    A(f"s_add_u32 {sT0}, {sT0}, {sT1}")
    A(f"s_add_u32 {sT0}, {sT0}, {QP}")
    A(f"v_lshlrev_b32 v{vPC}, 4, {t2}")
    A(f"v_lshl_add_u32 v{vPC}, {t3}, 18, v{vPC}")
    A(f"v_add_u32 v{vPC}, {sT0}, v{vPC}")
    A(f"ds_write_b128 v{vF}, {R4(vD)} offset:{L_S1}")
    A("s_waitcnt lgkmcnt(0)")
    barrier()
    if pub1:
        A(f"s_and_b32 {sT0}, {sROLE}, 0xc0")
        A(f"s_cbranch_scc1 L_nopub")
        for w_ in range(1, 4): A(f"ds_read_b128 {R4(vS+4*w_)}, v{vF} offset:{L_S1+1024*w_}")
        A("s_waitcnt lgkmcnt(0)")
        for i in (0, 2):
            A(f"v_pk_add_f32 {R2(vD+i)}, {R2(vD+i)}, {R2(vS+4+i)}")
            A(f"v_pk_add_f32 {R2(vS+8+i)}, {R2(vS+8+i)}, {R2(vS+12+i)}")
        for i in (0, 2): A(f"v_pk_add_f32 {R2(vD+i)}, {R2(vD+i)}, {R2(vS+8+i)}")
        for i in range(4): A(f"v_and_or_b32 v{vD+i}, v{vD+i}, {sMASK}, v{vT8}")
        if 'P' in abl: pass
        elif PAT == 1:
            A(f"buffer_atomic_swap_x2 {R2(vD)}, v{vXO}, {sWS}, 0 offen")
            A(f"buffer_atomic_swap_x2 {R2(vD+2)}, v{vXO}, {sWS}, 0 offen offset:8")
        elif PAT == 2:
            A(f"buffer_store_dwordx4 {R4(vD)}, v{vXO}, {sWS}, 0 offen")
            A("buffer_wbl2 sc1")
        else: A(f"buffer_store_dwordx4 {R4(vD)}, v{vXO}, {sWS}, 0 offen {psc}")
        g.label("L_nopub")
    else:
        for w_ in range(4): A(f"ds_read_b32 v{vS+w_}, v{vXE} offset:{L_S1+1024*w_}")
        A("s_waitcnt lgkmcnt(0)")
        A(f"v_add_f32 v{vS}, v{vS}, v{vS+1}")
        A(f"v_add_f32 v{vS+2}, v{vS+2}, v{vS+3}")
        A(f"v_add_f32 v{vS}, v{vS}, v{vS+2}")
        A(f"v_and_or_b32 v{vG}, v{vS}, {sMASK}, v{vT8}")
        g.vm(f"buffer_store_dword v{vG}, v{vXO}, {sWS}, 0 offen sc1", "pub")
    events.add("pub")
    stamp("p")
    while not (known("gq1") and known(f"k{GQ}")):
        pump(W)
        i = g.done + 1
        if "gq1" in g.issued: i = min(i, g.issued.index("gq1"))
        g.wait(g.issued[i])
    pump(W)
    stamp("g")
    def untag(regs, acc):
        for r in regs: A(f"v_xor_b32 v{r}, v{r}, v{vT8}")
        rs = list(regs)
        if len(rs) >= 3:
            A(f"v_or3_b32 {acc}, v{rs[0]}, v{rs[1]}, v{rs[2]}"); rs = rs[3:]
        else:
            A(f"v_or_b32 {acc}, v{rs[0]}, v{rs[1]}"); rs = rs[2:]
        while len(rs) >= 2:
            A(f"v_or3_b32 {acc}, {acc}, v{rs[0]}, v{rs[1]}"); rs = rs[2:]
        if rs: A(f"v_or_b32 {acc}, {acc}, v{rs[0]}")
        A(f"v_and_b32 {acc}, 0xff, {acc}")
        A(f"v_cmp_ne_u32 vcc, 0, {acc}")
    def test_gq(lbl):
        untag([vS + r for r in range(8)], t0)
        A(f"s_cbranch_vccz {lbl}")
    test_gq("L_gq_ok")
    spin("L_gq", gq_loads, test_gq)
    for i in range(4): A(f"v_permlane32_swap_b32 v{vS+i}, v{vS+4+i}")
    for i in range(4): A(f"v_add_f32 v{vS+i}, v{vS+i}, v{vS+4+i}")
    for i in range(2): A(f"v_permlane16_swap_b32 v{vS+i}, v{vS+2+i}")
    for i in range(2): A(f"v_add_f32 v{vS+i}, v{vS+i}, v{vS+2+i}")
    A(f"v_cvt_pk_bf16_f32 v{vQ[0]}, v{vS}, v{vS+1}")
    A(f"v_cvt_pk_bf16_f32 v{vQ[1]}, v{vS}, v{vS+1}")
    A(f"v_permlane16_swap_b32 v{vQ[0]}, v{vQ[1]}")
    A(f"v_mov_b32 v{vQ[2]}, v{vQ[0]}")
    A(f"v_mov_b32 v{vQ[3]}, v{vQ[1]}")
    A(f"v_permlane32_swap_b32 v{vQ[0]}, v{vQ[2]}")
    A(f"v_permlane32_swap_b32 v{vQ[1]}, v{vQ[3]}")
    stamp("q")
    if dbgt: A("s_memrealtime s[92:93]")
    def reduce4(t, dst):
        A(f"v_add_f32_dpp v{t[0]}, v{t[0]}, v{t[0]} row_ror:8 row_mask:0xf bank_mask:0x3")
        A(f"v_add_f32_dpp v{t[1]}, v{t[1]}, v{t[1]} row_ror:8 row_mask:0xf bank_mask:0x3")
        A(f"v_add_f32_dpp v{t[0]}, v{t[2]}, v{t[2]} row_ror:8 row_mask:0xf bank_mask:0xc")
        A(f"v_add_f32_dpp v{t[1]}, v{t[3]}, v{t[3]} row_ror:8 row_mask:0xf bank_mask:0xc")
        A(f"v_add_f32_dpp v{t[0]}, v{t[0]}, v{t[0]} row_half_mirror row_mask:0xf bank_mask:0x5")
        A(f"v_add_f32_dpp v{t[0]}, v{t[1]}, v{t[1]} row_half_mirror row_mask:0xf bank_mask:0xa")
        A(f"v_add_f32_dpp v{t[0]}, v{t[0]}, v{t[0]} quad_perm:[1,0,3,2] row_mask:0xf bank_mask:0xf")
        A(f"v_add_f32_dpp v{dst}, v{t[0]}, v{t[0]} quad_perm:[2,3,0,1] row_mask:0xf bank_mask:0xf")
    ktmp = kslot(12)
    for jg in range(16):
        nowait = known(f"k{4*jg+3}")
        g.wait(f"k{4*jg+3}")
        if 4 * jg >= NK:
            for r in range(16): A(f"v_accvgpr_read_b32 v{ktmp+r}, a{AK + 4*(4*jg-NK) + r}")
            kb = ktmp
        else: kb = kslot(4 * jg)
        for m in range(4):
            for i in range(4):
                kr = kb + 4 * i + m
                if m == 0: A(f"v_dot2_f32_bf16 v{vT[i]}, v{kr}, v{vQ[m]}, 0")
                else: A(f"v_dot2c_f32_bf16 v{vT[i]}, v{kr}, v{vQ[m]}")
        events.add(f"kg{jg}")
        pump(max(WK, g.outstanding() + (jg % 2 if nowait else 0)))
        reduce4(vT, vS + jg)
    stamp("k")
    with Trickle(True):
        C = math.log2(math.e) / math.sqrt(128.0)
        if mimic:
            C = math.log2(math.e)
            def rnd_pairs():
                for i in range(0, 16, 2): A(f"v_cvt_pk_bf16_f32 v{vS+i+1}, v{vS+i}, v{vS+i+1}")
                for i in range(0, 16, 2):
                    A(f"v_lshlrev_b32 v{vS+i}, 16, v{vS+i+1}")
                    A(f"v_and_b32 v{vS+i+1}, 0xffff0000, v{vS+i+1}")
            rnd_pairs()
            for i in range(16): A(f"v_mul_f32 v{vS+i}, {f2u(128.0 ** -0.5):#x}, v{vS+i}")
            rnd_pairs()
        A(f"v_max3_f32 {t0}, v{vS}, v{vS+1}, v{vS+2}")
        for i in range(3, 15, 2): A(f"v_max3_f32 {t0}, {t0}, v{vS+i}, v{vS+i+1}")
        A(f"v_max_f32 {t0}, {t0}, v{vS+15}")
        A(f"v_max_f32_dpp {t0}, {t0}, {t0} row_ror:4 row_mask:0xf bank_mask:0xf")
        A(f"v_max_f32_dpp {t0}, {t0}, {t0} row_ror:8 row_mask:0xf bank_mask:0xf")
        A(f"v_max_f32_dpp {t0}, {t0}, {t0} row_bcast:15 row_mask:0xa bank_mask:0xf")
        A(f"v_max_f32_dpp {t0}, {t0}, {t0} row_bcast:31 row_mask:0xc bank_mask:0xf")
        A(f"v_readlane_b32 {sM}, {t0}, 63")
        A(f"v_mov_b32 {t1}, {f2u(-C):#x}")
        A(f"v_mul_f32 {t1}, {sM}, {t1}")
        for i in range(16): A(f"v_fmamk_f32 v{vS+i}, v{vS+i}, {f2u(C):#x}, {t1}")
        for i in range(16): A(f"v_exp_f32 v{vS+i}, v{vS+i}")
        A(f"v_sub_f32 v{vMW}, 0, {t1}")
        A(f"v_add_f32 {t0}, v{vS}, v{vS+1}")
        A(f"v_add_f32 {t2}, v{vS+2}, v{vS+3}")
        for i in range(4, 16, 2):
            A(f"v_add_f32 {t0}, {t0}, v{vS+i}")
            A(f"v_add_f32 {t2}, {t2}, v{vS+i+1}")
        A(f"v_add_f32 {t0}, {t0}, {t2}")
        for i in range(16): A(f"v_cvt_pk_bf16_f32 v{vS+i}, v{vS+i}, v{vS+i}")
        A(f"v_add_f32_dpp {t0}, {t0}, {t0} row_ror:4 row_mask:0xf bank_mask:0xf")
        A(f"v_add_f32_dpp {t0}, {t0}, {t0} row_ror:8 row_mask:0xf bank_mask:0xf")
        A(f"v_add_f32_dpp {t0}, {t0}, {t0} row_bcast:15 row_mask:0xa bank_mask:0xf")
        A(f"v_add_f32_dpp {t0}, {t0}, {t0} row_bcast:31 row_mask:0xc bank_mask:0xf")
        A(f"v_readlane_b32 {sM}, {t0}, 63")
        A(f"v_mov_b32 v{vL}, {sM}")
    A(f"v_lshrrev_b32 {t0}, 6, v0")
    A(f"v_lshlrev_b32 {t0}, 3, {t0}")
    A(f"ds_write_b64 {t0}, {R2(vMW)} offset:{L_ML}")
    def ml_publish():
        A("s_waitcnt lgkmcnt(0)")
        barrier()
        A(f"s_and_b32 {sT0}, {sROLE}, 0xc0")
        A("s_cbranch_scc1 L_noml")
        A(f"v_and_b32 {t0}, 3, v0")
        A(f"v_lshlrev_b32 {t0}, 3, {t0}")
        A(f"ds_read_b64 v[{vT[2]}:{vT[3]}], {t0} offset:{L_ML}")
        A(f"v_mov_b32 v{vMLm+2}, v{vE}")
        A(f"v_mov_b32 v{vMLm+3}, v{vE+1}")
        A("s_waitcnt lgkmcnt(0)")
        A(f"v_max_f32_dpp v{vMLm}, {t2}, {t2} quad_perm:[1,0,3,2] row_mask:0xf bank_mask:0xf")
        A(f"v_max_f32_dpp v{vMLm}, v{vMLm}, v{vMLm} quad_perm:[2,3,0,1] row_mask:0xf bank_mask:0xf")
        A(f"v_sub_f32 {t2}, {t2}, v{vMLm}")
        A(f"v_exp_f32 {t2}, {t2}")
        A(f"v_mul_f32 {t2}, {t2}, {t3}")
        A(f"v_add_f32_dpp {t2}, {t2}, {t2} quad_perm:[1,0,3,2] row_mask:0xf bank_mask:0xf")
        A(f"v_add_f32_dpp v{vMLm+1}, {t2}, {t2} quad_perm:[2,3,0,1] row_mask:0xf bank_mask:0xf")
        if 'N' not in abl: A(f"buffer_store_dwordx4 {R4(vMLm)}, v{vML}, {sWS}, 0 offen sc1")
        g.label("L_noml")
        A("s_nop 1")
        events.add("mlpub")
    def test_ml(lbl):
        A(f"v_xor_b32 {t0}, v{vMLm+2}, v{vE}")
        A(f"v_xor_b32 {t1}, v{vMLm+3}, v{vE+1}")
        A(f"v_or_b32 {t0}, {t0}, {t1}")
        A(f"v_cmp_ne_u32 vcc, 0, {t0}")
        A(f"s_cbranch_vccz {lbl}")
    def test_fg(lbl):
        untag([vFG, vFG + 1], t0)
        A(f"s_and_b64 vcc, vcc, {sVM}")
        A(f"s_cbranch_vccz {lbl}")
    def bf16round(r):
        A(f"v_cvt_pk_bf16_f32 v{r}, v{r}, v{r}")
        A(f"v_and_b32 v{r}, 0xffff0000, v{r}")
    def gate_calc():
        for d in range(4):
            xr, gr = vXG + d, vXG + 4 + d
            A(f"v_lshlrev_b32 {t0}, 16, v{xr}")
            A(f"v_lshlrev_b32 {t1}, 16, v{gr}")
            A(f"v_and_b32 v{xr}, 0xffff0000, v{xr}")
            A(f"v_and_b32 v{gr}, 0xffff0000, v{gr}")
            A(f"v_mul_f32 {t0}, {t0}, {t1}")
            A(f"v_mul_f32 {t1}, v{xr}, v{gr}")
            A(f"v_cvt_pk_bf16_f32 {t0}, {t0}, {t1}")
            A(f"v_and_b32 {t1}, 0xffff0000, {t0}")
            A(f"v_lshlrev_b32 {t0}, 16, {t0}")
            if d == 0: A(f"v_add_f32 {t2}, {t0}, {t1}")
            else:
                A(f"v_add_f32 {t0}, {t0}, {t1}")
                A(f"v_add_f32 {t2}, {t2}, {t0}")
        for d in (1, 2, 4, 8): A(f"v_add_f32_dpp {t2}, {t2}, {t2} row_ror:{d} row_mask:0xf bank_mask:0xf")
        A(f"v_add_f32_dpp {t2}, {t2}, {t2} row_bcast:15 row_mask:0xa bank_mask:0xf")
        A(f"v_add_f32_dpp {t2}, {t2}, {t2} row_bcast:31 row_mask:0xc bank_mask:0xf")
        A(f"v_readlane_b32 {sT0}, {t2}, 63")
        A(f"v_mov_b32 v{vG}, {sT0}")
        bf16round(vG)
        A(f"v_mul_f32 v{vG}, {f2u(-math.log2(math.e)):#x}, v{vG}")
        A(f"v_exp_f32 v{vG}, v{vG}")
        A(f"v_add_f32 v{vG}, 1.0, v{vG}")
        A(f"v_rcp_f32 v{vG}, v{vG}")
        bf16round(vG)
        A(f"v_sub_f32 v{vOMG}, 1.0, v{vG}")
        bf16round(vOMG)
    def ffn_calc():
        test_fg("L_fg_ok")
        spin("L_fg", fg_loads, test_fg)
        u, up = vFG, vFG + 1
        A(f"v_cndmask_b32 v{u}, 0, v{u}, {sVM}")
        A(f"v_cndmask_b32 v{up}, 0, v{up}, {sVM}")
        for d in (4, 8):
            for r in (u, up): A(f"v_add_f32_dpp v{r}, v{r}, v{r} row_ror:{d} row_mask:0xf bank_mask:0xf")
        bf16round(u); bf16round(up)
        k1 = -2.0 * math.sqrt(2.0 / math.pi) * math.log2(math.e)
        A(f"v_mov_b32 {t2}, {f2u(k1):#x}")
        A(f"v_mul_f32 {t0}, v{u}, v{u}")
        A(f"v_fmamk_f32 {t0}, {t0}, {f2u(k1*0.044715):#x}, {t2}")
        A(f"v_mul_f32 {t0}, {t0}, v{u}")
        A(f"v_exp_f32 {t0}, {t0}")
        A(f"v_add_f32 {t0}, 1.0, {t0}")
        A(f"v_rcp_f32 {t0}, {t0}")
        A(f"v_mul_f32 v{u}, v{u}, {t0}")
        bf16round(u)
        A(f"v_mul_f32 v{u}, v{u}, v{up}")
        if WDLATE:
            bf16round(u)
            A(f"v_mul_f32 v{u}, v{u}, v{vOMG}")
        A(f"v_cvt_pk_bf16_f32 v{u}, v{u}, v{u}")
        for t in range(4):
            ab = kslot(12 + t) if WDLATE else fa
            for m in range(4):
                A(f"v_and_b32_dpp v{ab+m}, v{u}, v{vM[m]} row_newbcast:{t} row_mask:0xf bank_mask:0xf")
            if not WDLATE:
                A(f"v_mfma_f32_16x16x32_bf16 {R4(vD2)}, {R4(fa)}, {R4(kslot(t))}, {'0' if t == 0 else R4(vD2)}")
    vCA, vOA, sK1 = kslot(14), kslot(14) + 1, "s80"
    vTW, vTR, vF0, vAR = kslot(14) + 2, kslot(14) + 3, kslot(13), kslot(13) + 2
    vT12 = kslot(13) + 3
    def cons_addr():
        A(f"v_and_b32 v{vT12}, 0xfff, v{vE}")
        A(f"v_bfe_u32 {t0}, v0, 5, 1")
        A(f"v_lshlrev_b32 v{vCA}, 18, {t0}")
        A(f"v_and_b32 {t0}, 31, v0")
        A(f"v_lshl_add_u32 v{vCA}, {t0}, 11, v{vCA}")
        A(f"v_lshrrev_b32 {t1}, 6, v0")
        A(f"v_lshl_add_u32 v{vCA}, {t1}, 4, v{vCA}")
        A(f"s_lshl_b32 {sT0}, {sB}, 20")
        A(f"s_lshl_b32 {sT1}, {sH}, 6")
        A(f"s_add_u32 {sT0}, {sT0}, {sT1}")
        A(f"v_add_u32 v{vCA}, {sT0}, v{vCA}")
        A(f"s_mov_b32 {sK1}, {2 << 18}")
        A(f"v_bfe_u32 {t0}, v0, 2, 2")
        A(f"v_lshl_add_u32 {t0}, {t1}, 2, {t0}")
        A(f"s_lshl_b32 {sT0}, {sH}, 4")
        A(f"v_add_u32 {t0}, {sT0}, {t0}")
        A(f"v_and_b32 {t2}, 0x1e0, {t0}")
        A(f"v_and_b32 {t3}, 1, {t0}")
        A(f"v_lshl_add_u32 {t2}, {t3}, 4, {t2}")
        A(f"v_bfe_u32 {t3}, {t0}, 1, 4")
        A(f"v_add_lshl_u32 {t0}, {t2}, {t3}, 1")
        A(f"s_lshl_b32 {sT0}, {sB}, 10")
        A(f"v_add_u32 {t0}, {sT0}, {t0}")
        A(f"v_and_b32 {t2}, 0x33, v0")
        A(f"v_mov_b32 {t3}, {OOB}")
        A(f"v_cmp_eq_u32 vcc, 0, {t2}")
        A(f"v_cndmask_b32 v{vOA}, {t3}, {t0}, vcc")
    def tr_addr():
        A(f"v_lshrrev_b32 {t1}, 6, v0")
        A(f"v_mul_u32_u24 {t1}, {32*RS}, {t1}")
        A(f"v_add_u32 {t1}, {L_T}, {t1}")
        A(f"v_bfe_u32 {t3}, v0, 4, 2")
        A(f"v_mul_u32_u24 {t0}, {RS}, {t3}")
        A(f"v_and_b32 {t2}, 15, v0")
        A(f"v_lshl_add_u32 {t0}, {t2}, 4, {t0}")
        A(f"v_add_u32 v{vTW}, {t0}, {t1}")
        A(f"v_bfe_u32 {t0}, v0, 2, 2")
        A(f"v_lshl_add_u32 {t0}, {t3}, 3, {t0}")
        A(f"v_mul_u32_u24 {t0}, {RS}, {t0}")
        A(f"v_and_b32 {t2}, 3, v0")
        A(f"v_lshl_add_u32 {t0}, {t2}, 3, {t0}")
        A(f"v_add_u32 v{vTR}, {t0}, {t1}")
        A(f"v_mul_u32_u24 {t0}, 320, {t2}")
        A(f"v_lshl_add_u32 v{vAR}, {t3}, 4, {t0}")
    def transpose(kb):
        if kb == 0: tr_addr()
        A("s_waitcnt lgkmcnt(0)")
        for jj in range(8): A(f"ds_write_b128 v{vTW}, {R4(kslot(WO0+8*kb+jj))} offset:{4*jj*RS}")
        A("s_waitcnt lgkmcnt(0)")
        for nb in range(8):
            for hf in range(2):
                A(f"ds_read_b64_tr_b16 {R2(kslot(WO0+8*kb+nb)+2*hf)}, v{vTR} offset:{hf*4*RS+nb*32}")
    def ffn_relayout():
        for r in range(4): A(f"v_mul_f32 v{vD2+r}, v{vD2+r}, v{vOMG}")
        A(f"v_lshrrev_b32 {t1}, 6, v0")
        A(f"v_lshlrev_b32 {t1}, 9, {t1}")
        A(f"v_and_b32 {t2}, 15, v0")
        A(f"v_lshl_add_u32 {t0}, {t2}, 5, {t1}")
        A(f"v_bfe_u32 {t3}, v0, 4, 1")
        A(f"v_lshl_add_u32 {t0}, {t3}, 4, {t0}")
        A(f"ds_write_b128 {t0}, {R4(vD2)} offset:{L_F}")
        A(f"v_bfe_u32 {t3}, v0, 4, 2")
        A(f"v_lshl_add_u32 {t1}, {t3}, 7, {t1}")
        A(f"v_lshl_add_u32 {t1}, {t2}, 2, {t1}")
        A("s_waitcnt lgkmcnt(0)")
        A(f"ds_read_b32 v{vF0}, {t1} offset:{L_F}")
        A(f"ds_read_b32 v{vF0+1}, {t1} offset:{L_F+64}")
    def calc_f():
        if PM == "W": cons_addr()
        test_ml("L_ml_ok")
        spin("L_ml", ml_loads, test_ml)
        A(f"v_max_f32_dpp {t0}, v{vMLm}, v{vMLm} quad_perm:[1,0,3,2] row_mask:0xf bank_mask:0xf")
        A(f"v_max_f32_dpp {t0}, {t0}, {t0} quad_perm:[2,3,0,1] row_mask:0xf bank_mask:0xf")
        A(f"v_sub_f32 {t1}, v{vMLm}, {t0}")
        A(f"v_sub_f32 {t2}, v{vMW}, {t0}")
        A(f"v_exp_f32 {t1}, {t1}")
        A(f"v_exp_f32 {t2}, {t2}")
        A(f"v_mul_f32 {t1}, {t1}, v{vMLm+1}")
        for d in ("[1,0,3,2]", "[2,3,0,1]"): A(f"v_add_f32_dpp {t1}, {t1}, {t1} quad_perm:{d} row_mask:0xf bank_mask:0xf")
        A(f"v_rcp_f32 {t1}, {t1}")
        A(f"v_mul_f32 {t2}, {t2}, v{vG}")
        A(f"v_mul_f32 v{vF}, {t2}, {t1}")
    st = {}; ntr = [0]
    buildA(0, vS, 0)
    for j in range(64):
        g.wait(f"v{j}")
        A(f"v_mfma_f32_16x16x32_bf16 {R4(vD)}, {R4(vA[j%2])}, {A4(4*j)}, {'0' if j == 0 else R4(vD)}")
        pump(WV)
        if j < 63: buildA((j + 1) % 2, vS + (j + 1) // 4, 4 * ((j + 1) % 4))
        if j == JB:
            ml_publish()
        elif "gate" not in st and known("gw"):
            with Trickle(True): gate_calc()
            st["gate"] = j
        elif "ffn" not in st and known("fg1" if WDLATE else "wd3"):
            ffn_calc(); st["ffn"] = j
        elif "f" not in st and "gate" in st and known("mlld"):
            calc_f(); st["f"] = j
        elif "rel" not in st and "ffn" in st and j > st["ffn"] + 1:
            ffn_relayout(); st["rel"] = j
        elif ntr[0] < 4 and known(f"wo{8*ntr[0]+7}"):
            transpose(ntr[0]); st[f"tr{ntr[0]}"] = j; ntr[0] += 1
    pump(63)
    assert len(st) == 8 and pos[0] == len(seq), (st, pos[0], len(seq))
    print(st, file=sys.stderr)
    stamp("v")
    if dbgt: A("s_memrealtime s[94:95]")
    for r in range(4): A(f"v_mul_f32 v{vD+r}, v{vD+r}, v{vF}")
    A(f"v_cvt_pk_bf16_f32 v{vD}, v{vD}, v{vD+1}")
    A(f"v_cvt_pk_bf16_f32 v{vD+1}, v{vD+2}, v{vD+3}")
    A("s_mov_b32 exec_hi, 0")
    A(f"ds_write_b64 v{vLDS}, {R2(vD)} offset:{L_O}")
    A("s_mov_b32 exec_hi, -1")
    A("s_waitcnt lgkmcnt(0)")
    barrier()
    stamp("B")
    for kb in range(4): A(f"ds_read_b128 {R4(kslot(8+kb))}, v{vAR} offset:{L_O+64*kb}")
    if GRP:
        post = []
        for grp in range(4):
            for kb in range(4):
                if grp == 0: A(f"s_waitcnt lgkmcnt({3-kb})")
                for nb in (2 * grp, 2 * grp + 1):
                    A(f"v_mfma_f32_16x16x32_bf16 {R4(kslot(nb))}, {R4(kslot(8+kb))}, {R4(kslot(WO0+8*kb+nb))}, {'0' if kb == 0 else R4(kslot(nb))}")
                    if kb >= 2 and post: A(post.pop(0))
            for nb in (2 * grp, 2 * grp + 1): post.append(f"v_pk_add_f32 {R2(kslot(nb))}, {R2(kslot(nb))}, {R2(kslot(nb)+2)}")
            for nb in (2 * grp, 2 * grp + 1): post.append(f"v_add_f32_dpp v{vD+(nb&1)}, v{kslot(nb)}, v{kslot(nb)+1} quad_perm:[0,1,2,3] row_mask:{1<<(nb>>1):#x} bank_mask:0xf")
        for p_ in post: A(p_)
    else:
        for kb in range(4):
            A(f"s_waitcnt lgkmcnt({3-kb})")
            if kb == 0: stamp("R")
            for nb in range(8):
                A(f"v_mfma_f32_16x16x32_bf16 {R4(kslot(nb))}, {R4(kslot(8+kb))}, {R4(kslot(WO0+8*kb+nb))}, {'0' if kb == 0 else R4(kslot(nb))}")
        for nb in range(8): A(f"v_pk_add_f32 {R2(kslot(nb))}, {R2(kslot(nb))}, {R2(kslot(nb)+2)}")
        for nb in range(8):
            A(f"v_add_f32_dpp v{vD+(nb&1)}, v{kslot(nb)}, v{kslot(nb)+1} quad_perm:[0,1,2,3] row_mask:{1<<(nb>>1):#x} bank_mask:0xf")
    A(f"v_pk_add_f32 {R2(vD)}, {R2(vD)}, {R2(vF0)}")
    for r in range(2): A(f"v_and_or_b32 v{vD+r}, v{vD+r}, {sMASK12}, v{vT12}")
    g.vm(f"buffer_store_dwordx2 {R2(vD)}, v{vY}, {sWS}, 0 offen {ysc}", "ypub")
    stamp("y")
    yb = kslot(0)
    if PM == "W":
        assert ydense == 2
        A(f"s_cmp_lg_u32 {sSP}, 0")
        A("s_cbranch_scc1 L_notcons" if 'Y' not in abl else "s_branch L_fin")
        yr = kslot(8)
        A("s_mov_b64 s[64:65], -1"); A("s_mov_b64 s[66:67], -1")
        A(f"s_mov_b32 {sSPIN}, {spin_max}")
        g.label("L_slow")
        A("s_mov_b64 exec, s[64:65]")
        A(f"buffer_load_dwordx4 {R4(yr)}, v{vCA}, {sWS}, 0 offen {lsc}")
        A("s_mov_b64 exec, s[66:67]")
        A(f"buffer_load_dwordx4 {R4(yr+4)}, v{vCA}, {sWS}, {sK1} offen {lsc}")
        A("s_mov_b64 exec, -1")
        A(f"s_sub_u32 {sSPIN}, {sSPIN}, 1")
        for k in range(2):
            A(f"s_waitcnt vmcnt({1-k})")
            for r in range(4): A(f"v_xor_b32 v{yb+4*k+r}, v{yr+4*k+r}, v{vT12}")
            A(f"v_or3_b32 {t2}, v{yb+4*k}, v{yb+4*k+1}, v{yb+4*k+2}")
            A(f"v_bitop3_b32 {t2}, {t2}, v{yb+4*k+3}, {sLOW} bitop3:0xa8")
            A(f"v_cmp_ne_u32 s[{64+2*k}:{65+2*k}], 0, {t2}")
        A(f"v_pk_add_f32 {R2(yb)}, {R2(yb)}, {R2(yb+4)}")
        A("s_or_b64 vcc, s[64:65], s[66:67]")
        A("s_cbranch_scc0 L_got")
        if SL: A(f"s_sleep {SL}")
        A(f"s_cmp_lg_u32 {sSPIN}, 0")
        A("s_cbranch_scc1 L_slow")
        g.label("L_got")
        stamp("Z")
        A(f"v_pk_add_f32 {R2(yb+2)}, {R2(yb+2)}, {R2(yb+6)}")
        reduce4([yb, yb + 1, yb + 2, yb + 3], yb)
        A(f"v_mov_b32 v{yb+1}, v{yb}")
        A(f"v_permlane32_swap_b32 v{yb}, v{yb+1}")
        A(f"v_add_f32 v{yb}, v{yb}, v{yb+1}")
        A(f"v_mov_b32 v{yb+1}, v{yb}")
        A(f"v_permlane16_swap_b32 v{yb}, v{yb+1}")
        A(f"v_add_f32 v{yb}, v{yb}, v{yb+1}")
        A(f"v_cvt_pk_bf16_f32 v{yb}, v{yb}, v{yb}")
        A(f"buffer_store_short v{yb}, v{vOA}, {sOUT}, 0 offen {outsc}")
        A("s_branch L_fin")
    else:
        A(f"s_cmp_lg_u32 {sROLE}, 0")
        A("s_cbranch_scc1 L_notcons" if 'Y' not in abl else "s_branch L_fin")
        if ydense:
            A(f"v_lshrrev_b32 {t0}, 2, v0")
            A(f"v_lshlrev_b32 {t0}, 11, {t0}")
            A(f"v_and_b32 {t1}, 3, v0")
            A(f"v_lshl_add_u32 {t0}, {t1}, 4, {t0}")
            A(f"s_lshl_b32 {sT0}, {sB}, {20 if ydense == 2 else 18}")
            if ydense == 1: A(f"s_add_u32 {sT0}, {sT0}, 0x200000")
            A(f"s_lshl_b32 {sT1}, {sH}, 6")
            A(f"s_add_u32 {sT0}, {sT0}, {sT1}")
            A(f"v_add_u32 {t0}, {sT0}, {t0}")
        else:
            A(f"v_bfe_u32 {t0}, v0, 2, 3")
            A(f"v_lshlrev_b32 {t0}, 18, {t0}")
            A(f"v_and_b32 {t1}, 3, v0")
            A(f"v_lshl_add_u32 {t0}, {t1}, 4, {t0}")
            A(f"v_lshrrev_b32 {t2}, 5, v0")
            A(f"v_lshl_add_u32 {t0}, {t2}, 11, {t0}")
            A(f"s_lshl_b32 {sT0}, {sB}, 15")
            A(f"s_lshl_b32 {sT1}, {sH}, 6")
            A(f"s_add_u32 {sT0}, {sT0}, {sT1}")
            A(f"v_add_u32 {t0}, {sT0}, {t0}")
        A(f"v_bfe_u32 v{vY}, v0, 4, 1")
        A(f"v_bfe_u32 {t2}, v0, 5, 1")
        A(f"v_lshl_add_u32 v{vY}, v{vY}, 1, {t2}")
        A(f"v_lshl_add_u32 v{vY}, {t1}, 2, v{vY}")
        A(f"v_lshlrev_b32 v{vY}, 1, v{vY}")
        A(f"s_lshl_b32 {sT0}, {sBH}, 5")
        A(f"v_add_u32 v{vY}, {sT0}, v{vY}")
        A(f"v_and_b32 {t2}, 12, v0")
        A(f"v_mov_b32 {t3}, {OOB}")
        A(f"v_cmp_eq_u32 vcc, 0, {t2}")
        A(f"v_cndmask_b32 v{vY}, {t3}, v{vY}, vcc")
        yr = kslot(8)
        P = [f"s[{64+2*k}:{65+2*k}]" for k in range(8)]
        for k in range(8):
            A(f"s_mov_b64 {P[k]}, -1")
            A(f"s_mov_b32 s{80+k}, {((k>>1)<<18) + ((k&1)<<15) if ydense == 2 else k*(32768 if ydense else 4096)}")
        A(f"s_mov_b32 {sSPIN}, {spin_max}")
        def issue_round():
            for k in range(8):
                A(f"s_mov_b64 exec, {P[k]}")
                A(f"buffer_load_dwordx4 {R4(yr+4*k)}, {t0}, {sWS}, s{80+k} offen {lsc}")
            A("s_mov_b64 exec, -1")
        def check(k):
            for r in range(4): A(f"v_xor_b32 v{yb+4*k+r}, v{yr+4*k+r}, v{vT8}")
            A(f"v_or3_b32 {t2}, v{yb+4*k}, v{yb+4*k+1}, v{yb+4*k+2}")
            A(f"v_or_b32 {t2}, {t2}, v{yb+4*k+3}")
            A(f"v_cmp_ne_u32_sdwa {P[k]}, {t2}, 0 src0_sel:BYTE_0 src1_sel:DWORD")
        def any_pending():
            A("s_nop 0")
            A(f"s_or_b64 s[56:57], {P[0]}, {P[1]}")
            A(f"s_or_b64 s[58:59], {P[2]}, {P[3]}")
            A(f"s_or_b64 s[62:63], {P[4]}, {P[5]}")
            A(f"s_or_b64 vcc, {P[6]}, {P[7]}")
            A("s_or_b64 s[56:57], s[56:57], s[58:59]")
            A("s_or_b64 vcc, vcc, s[62:63]")
            A("s_or_b64 vcc, vcc, s[56:57]")
        if PM == "A":
            g.label("L_slow")
            issue_round()
            A(f"s_sub_u32 {sSPIN}, {sSPIN}, 1")
            for k in range(8):
                A(f"s_waitcnt vmcnt({7-k})")
                check(k)
            any_pending()
            A("s_cbranch_scc0 L_got")
            A(f"s_cmp_lg_u32 {sSPIN}, 0")
            A("s_cbranch_scc1 L_slow")
        elif PM == "B":
            g.label("L_slow")
            for k in range(8):
                A(f"s_mov_b64 exec, {P[k]}")
                A(f"s_cbranch_execz L_ns{k}")
                A(f"buffer_load_dwordx4 {R4(yr+4*k)}, {t0}, {sWS}, s{80+k} offen {lsc}")
                g.label(f"L_ns{k}")
            A("s_mov_b64 exec, -1")
            A(f"s_sub_u32 {sSPIN}, {sSPIN}, 1")
            A("s_waitcnt vmcnt(0)")
            for k in range(8):
                A(f"s_cmp_eq_u64 {P[k]}, 0")
                A(f"s_cbranch_scc1 L_skip{k}")
                check(k)
                g.label(f"L_skip{k}")
            any_pending()
            A("s_cbranch_scc0 L_got")
            A(f"s_cmp_lg_u32 {sSPIN}, 0")
            A("s_cbranch_scc1 L_slow")
        elif PM == "C":
            g.label("L_slow")
            issue_round()
            A(f"s_sub_u32 {sSPIN}, {sSPIN}, 1")
            for hk in range(4):
                A(f"s_or_b64 vcc, {P[2*hk]}, {P[2*hk+1]}")
                A(f"s_cbranch_scc0 L_skip{hk}")
                A(f"s_waitcnt vmcnt({6-2*hk})")
                check(2*hk); check(2*hk+1)
                g.label(f"L_skip{hk}")
            any_pending()
            A("s_cbranch_scc0 L_got")
            A(f"s_cmp_lg_u32 {sSPIN}, 0")
            A("s_cbranch_scc1 L_slow")
        else:
            g.label("L_slow")
            issue_round()
            A(f"s_sub_u32 {sSPIN}, {sSPIN}, 1")
            for k in range(8):
                A(f"s_waitcnt vmcnt({7-k})")
                check(k)
            A(f"s_bcnt1_i32_b64 {sT0}, {P[0]}")
            for k in range(1, 8):
                A(f"s_bcnt1_i32_b64 {sT1}, {P[k]}")
                A(f"s_add_u32 {sT0}, {sT0}, {sT1}")
            A(f"s_cmp_eq_u32 {sT0}, 0")
            A("s_cbranch_scc1 L_got")
            A(f"s_cmp_eq_u32 {sSPIN}, 0")
            A("s_cbranch_scc1 L_got")
            A(f"s_cmp_gt_u32 {sT0}, {POLLTH}")
            A("s_cbranch_scc1 L_slow")
            g.label("L_fast")
            issue_round()
            A(f"s_sub_u32 {sSPIN}, {sSPIN}, 1")
            A(f"s_waitcnt vmcnt({8*(POLLR-1)})")
            for k in range(8):
                A(f"s_cmp_eq_u64 {P[k]}, 0")
                A(f"s_cbranch_scc1 L_skip{k}")
                check(k)
                g.label(f"L_skip{k}")
            A("s_nop 0")
            A(f"s_or_b64 s[56:57], {P[0]}, {P[1]}")
            A(f"s_or_b64 s[58:59], {P[2]}, {P[3]}")
            A(f"s_or_b64 s[62:63], {P[4]}, {P[5]}")
            A(f"s_or_b64 vcc, {P[6]}, {P[7]}")
            A("s_or_b64 s[56:57], s[56:57], s[58:59]")
            A("s_or_b64 vcc, vcc, s[62:63]")
            A("s_or_b64 vcc, vcc, s[56:57]")
            A("s_cbranch_scc0 L_got")
            A(f"s_cmp_lg_u32 {sSPIN}, 0")
            A("s_cbranch_scc1 L_fast")
        g.label("L_got")
        stamp("Z")
        for stp in (16, 8, 4):
            for i in range(0, stp, 2):
                A(f"v_pk_add_f32 {R2(yb+i)}, {R2(yb+i)}, {R2(yb+i+stp)}")
        for d in (4, 8):
            for r in range(4): A(f"v_add_f32_dpp v{yb+r}, v{yb+r}, v{yb+r} row_ror:{d} row_mask:0xf bank_mask:0xf")
        A(f"v_permlane32_swap_b32 v{yb}, v{yb+1}")
        A(f"v_permlane32_swap_b32 v{yb+2}, v{yb+3}")
        A(f"v_add_f32 v{yb}, v{yb}, v{yb+1}")
        A(f"v_add_f32 v{yb+2}, v{yb+2}, v{yb+3}")
        A(f"v_permlane16_swap_b32 v{yb}, v{yb+2}")
        A(f"v_add_f32 v{yb}, v{yb}, v{yb+2}")
        A(f"v_cvt_pk_bf16_f32 v{yb}, v{yb}, v{yb}")
        A(f"buffer_store_short v{yb}, v{vY}, {sOUT}, 0 offen {outsc}")
        A("s_branch L_fin")
    g.label("L_notcons")
    A(f"s_or_b32 {sT0}, {sROLE}, {sBH}")
    A(f"s_cmp_lg_u32 {sT0}, {256 if PM == 'W' else 64}")
    A("s_cbranch_scc1 L_fin")
    A(f"v_and_b32 {t0}, 63, v0")
    A(f"v_and_b32 {t1}, 7, {t0}")
    A(f"v_lshrrev_b32 {t0}, 3, {t0}")
    A(f"v_lshlrev_b32 {t0}, 7, {t0}")
    A(f"v_lshl_add_u32 {t0}, {t1}, 18, {t0}")
    A(f"v_add_u32 {t0}, {MLBASE}, {t0}")
    A(f"s_mov_b32 {sSPIN}, {spin_max}" if not dry else f"s_mov_b32 {sSPIN}, s50")
    g.label("L_ver")
    for k in range(4):
        A(f"s_mov_b32 {sOFF}, {k*1024}")
        A(f"buffer_load_dwordx4 {R4(yb+4*k)}, {t0}, {sWS}, {sOFF} offen sc1")
    A(f"s_sub_u32 {sSPIN}, {sSPIN}, 1")
    A("s_waitcnt vmcnt(0)")
    for k in range(4):
        A(f"v_xor_b32 v{yb+4*k+2}, v{yb+4*k+2}, v{vE}")
        A(f"v_xor_b32 v{yb+4*k+3}, v{yb+4*k+3}, v{vE+1}")
    A(f"v_or3_b32 {t2}, v{yb+2}, v{yb+3}, v{yb+6}")
    A(f"v_or3_b32 {t2}, {t2}, v{yb+7}, v{yb+10}")
    A(f"v_or3_b32 {t2}, {t2}, v{yb+11}, v{yb+14}")
    A(f"v_or_b32 {t2}, {t2}, v{yb+15}")
    A(f"v_cmp_ne_u32 vcc, 0, {t2}")
    A("s_cbranch_vccz L_verok")
    A(f"s_cmp_lg_u32 {sSPIN}, 0")
    A("s_cbranch_scc1 L_ver")
    g.label("L_verok")
    A(f"v_add_u32 {t2}, {(1 - 0x9e3779b9) & 0xffffffff:#x}, v{vE}")
    A(f"s_mov_b32 {sOFF}, {EPOCH}")
    A(f"buffer_store_dword {t2}, off, {sWS}, {sOFF} sc1")
    g.label("L_fin")
    if meas:
        if meas[0] == "E": A("s_memrealtime s[94:95]")
        A("s_memrealtime s[96:97]")
        A("s_waitcnt lgkmcnt(0)")
        A("s_sub_u32 s94, s94, s92" if meas[0] != "S" else "s_mov_b32 s94, s88")
        A(f"s_mul_i32 s94, s94, {meas[1]}")
        A("s_min_u32 s94, s94, 20000")
        g.label("L_meas")
        A("s_memrealtime s[98:99]")
        A("s_waitcnt lgkmcnt(0)")
        A("s_sub_u32 s98, s98, s96")
        A("s_cmp_lt_u32 s98, s94")
        A("s_cbranch_scc1 L_meas")
    if dry:
        A("s_cmp_eq_u32 s51, 0")
        A("s_mov_b32 s51, 1")
        A(f"s_mov_b32 s50, {spin_max}")
        A("s_waitcnt vmcnt(0) lgkmcnt(0)")
        A("s_barrier")
        A("s_cbranch_scc0 L_fin2")
        A("s_branch L_again")
        g.label("L_fin2")
    if dbgt:
        A("s_memrealtime s[96:97]")
        A("s_mov_b32 s68, s86"); A("s_mov_b32 s69, s87"); A("s_mov_b32 s70, 256"); A("s_mov_b32 s71, 0x20000")
        A("s_waitcnt lgkmcnt(0)")
        A("s_not_b32 s91, s90")
        A("v_cmp_eq_u32 vcc, 0, v0")
        A("s_and_saveexec_b64 s[56:57], vcc")
        A("s_cbranch_execz L_end")
        for i, r in enumerate((91, 90, 98, 92, 94, 96)):
            A(f"v_mov_b32 v2, s{r}")
            A(f"buffer_atomic_umax v2, off, s[68:71], 0 offset:{4*i}")
            A("s_nop 2")
    if stamps:
        stamp()
        A("s_waitcnt lgkmcnt(0)")
        if spindiag:
            A("s_add_u32 s92, s90, s88"); A("s_addc_u32 s93, s91, 0")
        n = nstamp[0]
        A(f"s_mul_i32 {sT0}, s2, {8*n*(4 if wstamps else 1)}")
        A(f"s_add_u32 {sT0}, {sT0}, 0x8000000")
        A(f"v_mov_b32 {t0}, {sT0}")
        if wstamps:
            A(f"v_lshrrev_b32 {t1}, 6, v0")
            A(f"v_mul_u32_u24 {t1}, {8*n}, {t1}")
            A(f"v_add_u32 {t0}, {t0}, {t1}")
            A(f"v_and_b32 {t1}, 63, v0")
            A(f"v_cmp_eq_u32 vcc, 0, {t1}")
        else:
            A("v_cmp_eq_u32 vcc, 0, v0")
        A("s_and_saveexec_b64 s[56:57], vcc")
        A("s_cbranch_execz L_end")
        for i in range(n):
            r = stamp_regs[i]
            A(f"v_mov_b32 v2, s{r}"); A(f"v_mov_b32 v3, s{r+1}")
            A(f"global_store_dwordx2 {t0}, v[2:3], s[36:37] offset:{8*i}")
            A("s_nop 2")
        print("nstamps", n, file=sys.stderr)
    g.label("L_end")
    A("s_endpgm")
    g.raw('.section .rodata,"a"'); g.raw(".p2align 6")
    g.raw(f".amdhsa_kernel {NAME}_kernel")
    g.raw("  .amdhsa_next_free_vgpr 512"); g.raw("  .amdhsa_next_free_sgpr 102"); g.raw("  .amdhsa_accum_offset 256")
    g.raw("  .amdhsa_group_segment_fixed_size 0"); g.raw("  .amdhsa_kernarg_size 104"); g.raw("  .amdhsa_user_sgpr_count 2")
    g.raw("  .amdhsa_user_sgpr_kernarg_segment_ptr 1"); g.raw("  .amdhsa_system_sgpr_workgroup_id_x 1")
    g.raw(".end_amdhsa_kernel")
    open(fname, "w").write(g.text())

if __name__ == "__main__":
    ds = eval(sys.argv[1]) if len(sys.argv) > 1 else [dict()]
    fs = []
    for d in ds:
        fn = "k14_" + "_".join(f"{k}{str(v).replace(' ','')}" for k, v in d.items()) + ".s"
        gen(fn, **d); fs.append(fn)
    print(" ".join(fs))
```

```python
import sys, math, struct
from asmgen import Gen
NAME = "gated_mix__mha_block_cached__geglu_ffn__decode"

def f2u(x): return struct.unpack('<I', struct.pack('<f', x))[0]

def gen(fname, nt_kv="nt", nt_w="", nt_p="nt", W0=15, W=16, WK=16, WV=20, stamps=False, GQ=44, WO_START=2, WO_STEP=1.55,
        FFPOS=4, MLPOS=44, spin_max=1 << 20, abl="", dbgt=0, pfc=0, touch=0, LATE=0, WDLATE=0, dry=0, spindiag=0, KF=4, outsc="", POLLR=4, POLLTH=64, newpoll=1, ysc="sc1", lsc="sc1", yat=0, MLW=8, pub1=1, ydense=2, bias=1, meas=None, FGPOS=60, TR=0, wstamps=0, PM="W", mimic=1, RS=288, GRP=0, PAT=0, psc="sc1", qspread=1, JB=8, SL=0, xmap=0, PF=0, WS1=1, TAP=None):
    g = Gen(); A = g
    drop = []
    for ch, tags in (('o', ["wo"]), ('p', ["pc"]), ('G', ["gq"]), ('F', ["fg"]), ('M', ["mlld"]), ('N', ["mlpub"]), ('P', ["pub"]), ('y', ["ypub"]), ('d', ["wd", "xg", "gw"])):
        if ch in abl: drop += tags
    dropped = set()
    _vm = g.vm; _wait = g.wait
    def vm2(text, tag):
        if any(tag.startswith(d) for d in drop): dropped.add(tag); return
        _vm(text, tag)
    def wait2(tag):
        if tag not in dropped: _wait(tag)
    g.vm = vm2; g.wait = wait2
    def barrier(): A("s_barrier" if "b" not in abl else "s_nop 0")
    NK = 48
    ntkv = (" " + nt_kv) if nt_kv else ""
    ntw = (" " + nt_w) if nt_w else ""
    ntp = (" " + nt_p) if nt_p else ""
    for line in """; out = g*(softmax(q K^T) V Wo) + (1-g)*GEGLU(x), B=2, H=32, Sk=4096, Dh=128, D=512, F=1376.  One launch.
; 256 workgroups (one per CU) x 4 waves; workgroup = (b, h, quarter of the keys); wave = 256 keys.
;  1. x-projections (Wq, Wgate, Wup) are cut into 32 KiB pieces, one per workgroup; the partial sums are
;     handed over through d_ws while the K stream is already being buffered in registers.
;  2. K phase: v_dot2 + DPP reduce -> scores, per-wave true max, p = exp(s - max) in bf16.
;  3. V phase: MFMA with a diagonal A operand built from p; (max, sum) of the four key quarters are
;     exchanged through d_ws so that every workgroup normalises its own partial output.
;  4. o @ Wo[h] (Wo transposed through LDS beforehand) + its 12 rows of h @ Wdown -> 512 partial outputs,
;     published in d_ws; 256 waves add up 128 partials each and store the bf16 result.
; Hand-offs carry a tag derived from an epoch word in d_ws (advanced once per launch), so words left by
; an earlier launch are never taken for this launch's; the tag bits are removed before any value is used.
; Kernarg (ptrs): 0 x, 8 K, 16 V, 24 Wq, 32 Wo, 40 B_x (unused), 48 Wgate, 56 Wup, 64 Wdown, 72 gate_w,
;                 80 out, 88 debug (unused), 96 ws""".split("\n"): g.raw(line)
    g.raw("; @launch grid=(256,1,1) block=(256,1,1) lds=49152")
    g.raw('.amdgcn_target "amdgcn-amd-amdhsa--gfx950"')
    g.raw(".text"); g.raw(f".globl {NAME}_kernel"); g.raw(".p2align 8"); g.raw(f".type {NAME}_kernel,@function"); g.raw(f"{NAME}_kernel:")
    sX, sK, sV, sP, sWO, sWD, sGW, sOUT, sWS = [f"s[{i}:{i+3}]" for i in range(4, 40, 4)]
    sOFFK = "s3"
    sSLOT, sMLA, sPI, sSTR, sSELLO, sSELHI, sUPOFF, sROLE, sMASK = "s40", "s41", "s42", "s43", "s44", "s45", "s46", "s47", "s48"
    sLOW = "s89"; sMASK12 = "s88"; sPSLOT = "s49"; sFFN = "s46"; sKQ = "s51"
    sH, sB, sSP, sBH, sCB, sT0, sT1, sOFF = "s52", "s53", "s54", "s55", "s56", "s57", "s58", "s59"
    sM, sSPIN = "s60", "s61"
    sVM = "s[62:63]"
    stamp_regs = [90, 92, 94, 96, 98, 100, 50]
    nstamp = [0]
    def stamp(name="*"):
        if meas and name == meas[0]: A("s_memrealtime s[94:95]")
        if stamps and (name in str(stamps) or name == "*"):
            r = stamp_regs[nstamp[0]]; nstamp[0] += 1
            A(f"s_memrealtime s[{r}:{r+1}]")
    YBASE, MLBASE, EPOCH, QP, WSSZ, OOB = 0, 0x18000, 0x20000, 0x10000, 0x280000, 0x40000000
    L_S1, L_O, L_F, L_T, L_ML = 0, 4096, 5632, 8192, 7936
    vKV, vPC, vWO, vFG_A, vWD, vY, vML, vMLR, vLDS = 1, 2, 3, 4, 5, 6, 7, 8, 9
    vT8 = 10
    vXE, vXO = 12, 13
    vOMG = 14
    vFG_B = 43
    vMW, vL, vE = 16, 17, 18
    vG, vF = 11, 15
    vM = [20, 21, 22, 23]
    vQ = [24, 25, 26, 27]
    vA = [28, 32]
    vD, vD2 = 36, 40
    vT = list(range(44, 48))
    vS = 48
    vK0 = 64
    def kslot(i): return vK0 + 4 * i
    def R4(b): return f"v[{b}:{b+3}]"
    def R2(b): return f"v[{b}:{b+1}]"
    def A4(b): return f"a[{b}:{b+3}]"
    t0, t1, t2, t3 = [f"v{i}" for i in vT]
    AK, AP = 160, 224

    A(f"s_lshr_b32 {sOFFK}, s2, 8")
    A("s_cbranch_scc1 L_end")
    A("s_load_dwordx2 s[8:9], s[0:1], 8")
    if WS1: A("s_load_dwordx2 s[36:37], s[0:1], 96")
    if WS1 == 2:
        A("s_load_dwordx16 s[64:79], s[0:1], 0")
        A("s_load_dwordx8 s[80:87], s[0:1], 64")
    stamp()
    if meas: A("s_memrealtime s[92:93]")
    A(f"s_bfe_u32 {sT0}, s2, 0x40003")
    A(f"s_and_b32 {sT1}, s2, 7")
    A(f"s_lshl4_add_u32 {sCB}, {sT1}, {sT0}")
    A(f"s_and_b32 {sOFF}, s2, 0x80")
    A(f"s_add_u32 {sOFF}, {sOFF}, {sCB}")
    A(f"v_lshlrev_b32 v{vKV}, 4, v0")
    A(f"v_and_b32 {t0}, 0xc0, v0")
    A(f"v_mad_u32_u24 v{vKV}, {t0}, 48, v{vKV}")
    A(f"s_lshl_b32 s10, 1, 26")
    A(f"v_lshl_add_u32 v{vKV}, {sOFF}, 18, v{vKV}")
    A("s_mov_b32 s11, 0x20000")
    cur_off = [None]
    def setoff(v):
        if cur_off[0] != v:
            A(f"s_mov_b32 {sOFFK}, {v}"); cur_off[0] = v
    def ld_k(j):
        def f():
            setoff((j // 4) * 16384)
            dst = R4(kslot(j)) if j < NK else A4(AK + 4 * (j - NK))
            g.vm(f"buffer_load_dwordx4 {dst}, v{vKV}, {sK}, {sOFFK} offen offset:{(j%4)*1024}{ntkv}", f"k{j}")
        return (None, f)
    cur_off[0] = 0
    def piece_setup():
        if WS1 != 2:
            A("s_load_dwordx16 s[64:79], s[0:1], 0")
            A("s_load_dwordx8 s[80:87], s[0:1], 64")
        if not WS1: A("s_load_dwordx2 s[36:37], s[0:1], 96")
        A(f"s_lshr_b32 {sH}, {sCB}, 2")
        A(f"s_and_b32 {sSP}, {sCB}, 3")
        A(f"s_lshr_b32 {sB}, s2, 7")
        A(f"s_lshr_b32 {sBH}, {sOFF}, 2")
        for r, sz in ((6, 2048), (38, WSSZ)): A(f"s_mov_b32 s{r}, {sz}")
        for r in (7, 19, 39): A(f"s_mov_b32 s{r}, 0x20000")
        if bias:
            A(f"s_and_b32 {sFFN}, s2, 1")
            A(f"s_bfe_u32 {sT0}, s2, 0x20001")
            A(f"s_lshr_b32 {sT1}, s2, 3")
            A(f"s_mul_i32 {sPSLOT}, {sT0}, 22")
            A(f"s_lshl_b32 {sT0}, {sT0}, 5")
            A(f"s_cmp_eq_u32 {sFFN}, 0")
            A(f"s_cselect_b32 {sPSLOT}, {sT0}, {sPSLOT}")
            A(f"s_add_u32 {sPSLOT}, {sPSLOT}, {sT1}")
            A(f"s_cmp_lt_u32 {sT1}, 22")
            A(f"s_cselect_b32 s18, {512*2752}, 0")
            A(f"s_lshr_b32 {sPI}, {sPSLOT}, 2")
            A(f"s_and_b32 {sKQ}, {sPSLOT}, 3")
            A(f"s_lshl_b32 {sT1}, {sFFN}, 7")
            A(f"s_add_u32 {sPSLOT}, {sPSLOT}, {sT1}")
            A(f"s_cmp_ge_u32 {sPI}, 11")
            A(f"s_cselect_b32 {sT0}, 11, 0")
            A(f"s_sub_u32 {sT0}, {sPI}, {sT0}")
            A(f"s_mov_b32 {sSTR}, 2752")
            A(f"s_cmp_eq_u32 {sFFN}, 0")
            A(f"s_cselect_b32 s18, {4<<20}, s18")
            A(f"s_cselect_b32 {sSTR}, 8192, {sSTR}")
            A(f"s_cselect_b32 {sT0}, {sPI}, {sT0}")
        else:
            A(f"s_lshl3_add_u32 {sPI}, {sT1}, {sT0}")
            A(f"s_mov_b32 {sFFN}, {sB}")
            A(f"s_mov_b32 {sKQ}, {sSP}")
            A(f"s_cmp_lt_u32 {sPI}, 22")
            A(f"s_cselect_b32 s18, {512*2752}, 0")
            A(f"s_cmp_ge_u32 {sPI}, 11")
            A(f"s_cselect_b32 {sT0}, 11, 0")
            A(f"s_sub_u32 {sT0}, {sPI}, {sT0}")
            A(f"s_lshl2_add_u32 {sPSLOT}, {sPI}, {sSP}")
            A(f"s_add_u32 {sPSLOT}, {sPSLOT}, 128")
            A(f"s_mov_b32 {sSTR}, 2752")
            A(f"s_cmp_eq_u32 {sB}, 0")
            A(f"s_cselect_b32 s18, {4<<20}, s18")
            A(f"s_cselect_b32 {sSTR}, 8192, {sSTR}")
            A(f"s_cselect_b32 {sT0}, {sH}, {sT0}")
            A(f"s_cselect_b32 {sPSLOT}, {sCB}, {sPSLOT}")
        A(f"s_lshl_b32 {sT0}, {sT0}, 8")
        A(f"v_and_b32 {t2}, 15, v0")
        A(f"v_lshrrev_b32 v{vF}, 4, v0")
        A(f"v_lshlrev_b32 v{vF}, 3, v{vF}")
        A(f"s_lshl_b32 {sT1}, {sKQ}, 7")
        A(f"v_add_u32 v{vF}, {sT1}, v{vF}")
        A(f"v_mul_u32_u24 v{vPC}, {sSTR}, v{vF}")
        A(f"v_lshl_add_u32 v{vPC}, {t2}, 4, v{vPC}")
        A(f"v_add_u32 v{vPC}, {sT0}, v{vPC}")
        A(f"v_bfe_u32 v{vG}, v0, 3, 1")
        A(f"v_lshlrev_b32 v{vG}, 10, v{vG}")
        A(f"v_lshl_add_u32 v{vG}, v{vF}, 1, v{vG}")
        A(f"s_mov_b32 {sOFF}, {EPOCH}")
    A("s_waitcnt lgkmcnt(0)")
    stamp("a")
    for j in range(KF): ld_k(j)[1]()
    piece_setup()
    if WS1 != 2: A("s_waitcnt lgkmcnt(0)")
    g.vm(f"buffer_load_dwordx2 {R2(vE)}, off, {sWS}, {sOFF} sc1", "ep")
    A(f"s_cmp_ge_u32 {sPI}, 11")
    A("s_cselect_b32 s16, s78, s76"); A("s_cselect_b32 s17, s79, s77")
    A(f"s_cmp_eq_u32 {sFFN}, 0")
    A("s_cselect_b32 s16, s70, s16"); A("s_cselect_b32 s17, s71, s17")
    A("s_mov_b32 s4, s64"); A("s_mov_b32 s5, s65")
    g.vm(f"buffer_load_dwordx4 {R4(vQ[0])}, v{vG}, {sX}, 0 offen", "x")
    for j in range(8):
        if j == 0: so = "0"
        elif j == 1: so = sSTR
        elif j == 2: A(f"s_lshl_b32 {sOFF}, {sSTR}, 1"); so = sOFF
        else: A(f"s_add_u32 {sOFF}, {sOFF}, {sSTR}"); so = sOFF
        g.vm(f"buffer_load_dwordx4 {A4(AP+4*j)}, v{vPC}, {sP}, {so} offen{ntp}", f"pc{j}")
    if PF:
        A("s_getpc_b64 s[50:51]") if not bias else A("s_getpc_b64 s[62:63]")
        g.label("L_pc")
        A(f"s_lshr_b32 {sT0}, s2, 3")
        A(f"s_mul_i32 {sT0}, {sT0}, {PF*512}")
        A(f"v_lshrrev_b32 v{vY}, 6, v0")
        A(f"v_mul_u32_u24 v{vY}, {PF*128}, v{vY}")
        A(f"v_and_b32 v{vML}, 63, v0")
        A(f"v_lshl_add_u32 v{vY}, v{vML}, 4, v{vY}")
        A(f"v_add_u32 v{vY}, {sT0}, v{vY}")
        A(f"v_min_u32 v{vY}, L_end-L_pc-16, v{vY}")
        A(f"s_mov_b64 exec, {(1 << (8*PF)) - 1}")
        g.vm(f"global_load_dwordx4 {R4(kslot(47))}, v{vY}, s[62:63]", "pf")
        A("s_mov_b64 exec, -1")
    if meas and meas[0] == "C":
        A("s_getreg_b32 s92, hwreg(HW_REG_XCC_ID)")
        A("s_and_b32 s92, s92, 15")
    if meas and meas[0] in "XC":
        A("s_cmp_lg_u32 s2, 0")
        A("s_cbranch_scc1 L_nost")
        A("v_mov_b32 v6, s92"); A("v_mov_b32 v7, 0")
        A("global_store_dword v7, v6, s[86:87] sc1")
        g.label("L_nost")
        A("s_mov_b64 s[100:101], s[86:87]")
    stamp("i")
    if touch:
        for d, s_ in ((12, 68), (20, 72), (24, 80), (28, 82)):
            A(f"s_mov_b32 s{d}, s{s_}"); A(f"s_mov_b32 s{d+1}, s{s_+1}")
        for r, sz in ((14, 64 << 20), (22, 4 << 20), (26, 1376 * 1024), (30, 1024)): A(f"s_mov_b32 s{r}, {sz}")
        for r in (15, 23, 27, 31): A(f"s_mov_b32 s{r}, 0x20000")
        A(f"v_and_b32 v{vY}, 0xfffff000, v{vKV}")
        g.vm(f"buffer_load_dword v{kslot(43)}, v{vY}, {sV}, 0 offen{ntkv}", "tv")
        A(f"s_lshl_b32 {sOFF}, {sH}, 17")
        g.vm(f"buffer_load_dword v{kslot(43)+1}, off, {sWO}, {sOFF}", "two")
        g.vm(f"buffer_load_dword v{kslot(43)+2}, off, {sWD}, 0", "twd")
        g.vm(f"buffer_load_dword v{kslot(43)+3}, off, {sGW}, 0", "tgw")
    events = set(); seq = []
    def ld_v(j):
        pre = None
        if 4 * j >= AP: pre = "s1done"
        elif 4 * j >= AK: pre = f"kg{(NK + (4*j - AK)//4)//4}"
        def f():
            setoff((j // 4) * 16384)
            g.vm(f"buffer_load_dwordx4 {A4(4*j)}, v{vKV}, {sV}, {sOFFK} offen offset:{(j%4)*1024}{ntkv}", f"v{j}")
        return (pre, f)
    WO0 = 16
    def ld_wo(j):
        slot = WO0 + j
        def f():
            A(f"s_mov_b32 {sOFF}, {j * 4096}")
            g.vm(f"buffer_load_dwordx4 {R4(kslot(slot))}, v{vWO}, {sWO}, {sOFF} offen{ntw}", f"wo{j}")
        return (f"kg{slot//4}", f)
    def ld_wd(t):
        def f(): g.vm(f"buffer_load_dwordx4 {R4(kslot(t))}, v{vWD}, {sWD}, 0 offen offset:{t*1024}{ntw}", f"wd{t}")
        return ("kg0", f)
    vFG = vXE; vXG = kslot(6); vMLm = kslot(9); fa = kslot(10)
    tq = [vS, vS + 4, vS + 8, vS + 12, vA[0], vA[1], vD, vD2]
    def gq_loads(emit):
        for hf in range(2):
            emit(f"buffer_load_dwordx4 {R4(vS+4*hf)}, v{vPC}, {sWS}, 0 offen offset:{hf*256} sc1", f"gq{hf}")
    def fg_loads(emit):
        emit(f"buffer_load_dword v{vFG}, v{vFG_A}, {sWS}, 0 offen sc1", "fg0")
        emit(f"buffer_load_dword v{vFG+1}, v{vFG_B}, {sWS}, 0 offen sc1", "fg1")
    def ml_loads(emit): emit(f"buffer_load_dwordx4 {R4(vMLm)}, v{vMLR}, {sWS}, 0 offen sc1", "mlld")
    def ld_gate():
        def f():
            A(f"v_and_b32 v{fa}, 63, v0")
            A(f"v_lshlrev_b32 v{fa}, 4, v{fa}")
            A(f"s_lshl_b32 {sOFF}, {sB}, 10")
            g.vm(f"buffer_load_dwordx4 {R4(vXG)}, v{fa}, {sX}, {sOFF} offen", "xg")
            g.vm(f"buffer_load_dwordx4 {R4(vXG+4)}, v{fa}, {sGW}, 0 offen", "gw")
        return ("kg2", f)
    def once(pre, loads):
        def f(): loads(g.vm)
        return (pre, f)
    for j in range(KF, 64):
        seq.append(ld_k(j))
        if j == GQ:
            seq.append(once("pub", gq_loads))
            if FGPOS < 0: seq.append(once("pub", fg_loads))
        if j == FGPOS: seq.append(once("pub", fg_loads))
    wo_pos = {}
    if LATE: WO_STEP = (58.0 - WO_START) / (32 - LATE)
    for j in range(32): wo_pos.setdefault(int(WO_STEP * j) + WO_START if j < 32 - LATE else 63, []).append(j)
    for j in range(64):
        seq.append(ld_v(j))
        for w_ in wo_pos.get(j, []): seq.append(ld_wo(w_))
        if j == FFPOS:
            seq.append(ld_gate())
            if not WDLATE:
                for t in range(4): seq.append(ld_wd(t))
        if j == 63 and WDLATE:
            for t in range(4): seq.append(ld_wd(t))
        if j == MLPOS: seq.append(once("mlpub", ml_loads))
    pos = [0]
    def pump(win):
        while pos[0] < len(seq):
            pre, f = seq[pos[0]]
            if pre is not None and pre not in events: break
            if g.outstanding() >= win: break
            pos[0] += 1
            f()
    class Trickle:
        def __init__(s_, on): s_.on = on
        def __enter__(s_):
            if TR and s_.on:
                s_.cnt = 0; s_.orig = Gen.__call__
                me = s_
                def call(self, text):
                    me.orig(self, text)
                    if me.busy: return
                    me.cnt += 1
                    if me.cnt % TR == 0 and g.outstanding() < 56 and not text.startswith(("v_cmp", "s_")):
                        me.busy = True; pump(g.outstanding() + 1); me.busy = False
                s_.busy = False
                Gen.__call__ = call
            return s_
        def __exit__(s_, *a):
            if TR and s_.on: Gen.__call__ = s_.orig
    def known(tag): return tag in dropped or (tag in g.issued and g.issued.index(tag) < g.done)
    def buildA(aset, src, lane):
        for m in range(4):
            A(f"v_and_b32_dpp v{vA[aset]+m}, v{src}, v{vM[m]} row_newbcast:{lane} row_mask:0xf bank_mask:0xf")
    def spin(label, loads, test):
        if {"L_gq": "G", "L_fg": "F", "L_ml": "M"}.get(label, "?") in abl:
            g.label(f"{label}_ok"); A("s_nop 4"); return
        A(f"s_mov_b32 {sSPIN}, {spin_max}" if not dry else f"s_mov_b32 {sSPIN}, s50")
        g.label(f"{label}_spin")
        A("s_nop 4")
        loads(lambda text, tag: A(text))
        A("s_waitcnt vmcnt(0)")
        test(f"{label}_ok")
        A(f"s_sub_u32 {sSPIN}, {sSPIN}, 1")
        A(f"s_cmp_lg_u32 {sSPIN}, 0")
        A(f"s_cbranch_scc1 {label}_spin")
        g.label(f"{label}_ok")
        A("s_nop 4")
        if spindiag == 1:
            A(f"s_cmp_lg_u32 {sSPIN}, 0")
            A(f"s_cselect_b32 {sSPIN}, {(dict(L_gq=100, L_fg=1000, L_ml=10000) if not meas else dict(L_gq=1000, L_fg=2000, L_ml=4000))[label]}, 0")
            A(f"s_add_u32 s87, s87, {sSPIN}")
            A(f"s_mov_b32 {sSPIN}, 0")

    if spindiag:
        A("s_mov_b32 s87, 0"); A(f"s_mov_b32 {sSPIN}, 0")
    pump(W0)
    for r, sz in ((14, 64 << 20), (22, 4 << 20), (26, 1376 * 1024), (30, 1024), (34, 2048)): A(f"s_mov_b32 s{r}, {sz}")
    for r in (15, 23, 27, 31, 35): A(f"s_mov_b32 s{r}, 0x20000")
    A(f"v_and_b32 {t0}, 63, v0")
    A(f"v_lshrrev_b32 {t1}, 6, v0")
    A(f"v_bfe_u32 {t3}, v0, 4, 2")
    A(f"v_readfirstlane_b32 {sROLE}, v0")
    for d, s_ in ((12, 68), (20, 72), (24, 80), (28, 82), (32, 84)):
        A(f"s_mov_b32 s{d}, s{s_}"); A(f"s_mov_b32 s{d+1}, s{s_+1}")
    A(f"v_and_b32 v{vF}, 1, v0")
    A(f"v_cmp_eq_u32 vcc, 1, v{vF}")
    A(f"v_mov_b32 v{vF}, 0xffff")
    A(f"v_mov_b32 v{vG}, 0xffff0000")
    A(f"v_cndmask_b32 v{vF}, v{vF}, v{vG}, vcc")
    A(f"v_bfe_u32 v{vG}, v0, 1, 2")
    for m in range(4):
        A(f"v_cmp_eq_u32 vcc, {m}, v{vG}")
        A(f"v_cndmask_b32 v{vM[m]}, 0, v{vF}, vcc")
    A(f"s_mov_b32 {sSELLO}, 0x01000100"); A(f"s_mov_b32 {sSELHI}, 0x03020302")
    A(f"s_mov_b32 {sMASK}, 0xffffff00"); A(f"s_mov_b32 {sLOW}, 0xfff"); A(f"s_mov_b32 {sMASK12}, 0xfffff000")
    A(f"s_lshl_b32 {sSLOT}, {sB}, 7"); A(f"s_add_u32 {sSLOT}, {sSLOT}, {sCB}")
    if ydense == 2:
        A(f"s_lshr_b32 {sT0}, {sSLOT}, 5"); A(f"s_lshl_b32 {sT0}, {sT0}, 18")
        A(f"s_and_b32 {sSLOT}, {sSLOT}, 31"); A(f"s_lshl_b32 {sSLOT}, {sSLOT}, 11"); A(f"s_add_u32 {sSLOT}, {sSLOT}, {sT0}")
    elif ydense:
        A(f"s_lshl_b32 {sSLOT}, {sSLOT}, 11"); A(f"s_add_u32 {sSLOT}, {sSLOT}, 0x200000")
    else:
        A(f"s_and_b32 {sT0}, {sSLOT}, 7"); A(f"s_lshl_b32 {sT0}, {sT0}, 18")
        A(f"s_lshr_b32 {sSLOT}, {sSLOT}, 3"); A(f"s_lshl_b32 {sSLOT}, {sSLOT}, 11"); A(f"s_add_u32 {sSLOT}, {sSLOT}, {sT0}")
    A(f"s_and_b32 {sT0}, {sBH}, 1"); A(f"s_lshl_b32 {sT0}, {sT0}, 20")
    A(f"s_lshr_b32 {sMLA}, {sBH}, 1"); A(f"s_lshl_b32 {sMLA}, {sMLA}, 7")
    A(f"s_add_u32 {sMLA}, {sMLA}, {sT0}"); A(f"s_add_u32 {sMLA}, {sMLA}, {MLBASE}")
    A(f"v_mov_b32 v{vML}, {OOB}")
    A(f"v_lshlrev_b32 v{vY}, 3, v0")
    A(f"v_add_u32 v{vY}, {sSLOT}, v{vY}")
    A(f"v_mul_u32_u24 v{vLDS}, 320, {t1}")
    A(f"v_lshl_add_u32 v{vLDS}, {t2}, 4, v{vLDS}")
    A(f"v_lshl_add_u32 v{vLDS}, {t3}, 3, v{vLDS}")
    A(f"v_and_b32 v{vMLR}, 3, v0")
    A(f"v_lshlrev_b32 v{vMLR}, 18, v{vMLR}")
    A(f"v_add_u32 v{vMLR}, {sMLA}, v{vMLR}")
    A(f"v_lshlrev_b32 v{vWD}, 8, {t1}")
    A(f"v_lshl_add_u32 v{vWD}, {t2}, 4, v{vWD}")
    A(f"v_lshl_add_u32 v{vWO}, {t3}, 10, v{vWD}")
    A(f"s_lshl_b32 {sOFF}, {sH}, 17")
    A(f"v_add_u32 v{vWO}, {sOFF}, v{vWO}")
    A(f"v_lshl_add_u32 v{vWD}, {t3}, 12, v{vWD}")
    A(f"s_mul_i32 {sOFF}, {sCB}, {12*1024}")
    A(f"v_add_u32 v{vWD}, {sOFF}, v{vWD}")
    A(f"v_cmp_gt_u32 {sVM}, 3, {t3}")
    A(f"v_cndmask_b32 v{vWD}, v{vML}, v{vWD}, {sVM}")
    A(f"v_and_b32 v{vF}, 3, v0")
    A(f"v_lshl_add_u32 v{vF}, {t3}, 2, v{vF}")
    A(f"s_mul_i32 {sT0}, {sCB}, 12")
    A(f"v_add_u32 v{vF}, {sT0}, v{vF}")
    A(f"v_mov_b32 v{vG}, 1376")
    A(f"v_cmp_lt_u32 vcc, v{vF}, v{vG}")
    A(f"s_and_b64 {sVM}, {sVM}, vcc")
    def pos_add(dst, col, tmp):
        A(f"v_bfe_u32 v{tmp}, v{col}, 2, 1")
        A(f"v_lshl_add_u32 v{dst}, v{tmp}, 8, v{dst}")
        A(f"v_bfe_u32 v{tmp}, v{col}, 3, 4")
        A(f"v_lshl_add_u32 v{dst}, v{tmp}, 4, v{dst}")
        A(f"v_and_b32 v{tmp}, 3, v{col}")
        A(f"v_lshl_add_u32 v{dst}, v{tmp}, 2, v{dst}")
    A(f"v_bfe_u32 v{vD}, v0, 2, 2")
    A(f"v_lshlrev_b32 v{vD}, 18, v{vD}")
    pos_add(vD, vF, vG)
    A(f"s_lshl_b32 {sT0}, {sB}, 9")
    A(f"s_add_u32 {sT0}, {sT0}, {QP + 16*1024}")
    A(f"v_add_u32 v{vD}, {sT0}, v{vD}")
    A(f"v_lshrrev_b32 v{vF}, 7, v{vF}")
    for m_, dst in ((0, vFG_A), (1, vFG_B)):
        if m_: A(f"v_add_u32 v{vF}, 11, v{vF}")
        A(f"v_and_b32 v{vG}, 1, v{vF}")
        A(f"v_lshl_add_u32 v{dst}, v{vG}, 20, v{vD}")
        A(f"v_lshrrev_b32 v{vG}, 1, v{vF}")
        A(f"v_lshl_add_u32 v{dst}, v{vG}, 10, v{dst}")
        A(f"v_cndmask_b32 v{dst}, v{vML}, v{dst}, {sVM}")
    A(f"s_and_b32 {sT0}, {sPSLOT}, 7"); A(f"s_lshl_b32 {sT0}, {sT0}, 18")
    A(f"s_lshr_b32 {sT1}, {sPSLOT}, 3"); A(f"s_lshl_b32 {sT1}, {sT1}, 10")
    A(f"s_add_u32 {sT0}, {sT0}, {sT1}")
    A(f"s_add_u32 {sT0}, {sT0}, {QP}")
    A(f"s_cmp_eq_u32 s18, 0")
    A(f"s_cselect_b32 {sT0}, {OOB}, {sT0}")
    if pub1:
        A(f"v_lshlrev_b32 v{vXO}, 4, {t0}")
        A(f"v_add_u32 v{vXO}, {sT0}, v{vXO}")
    else:
        A(f"v_lshlrev_b32 v{vXE}, 2, v0")
        A(f"v_lshrrev_b32 v{vXO}, 7, v0")
        A(f"v_lshlrev_b32 v{vXO}, 9, v{vXO}")
        pos_add(vXO, 0, vG)
        A(f"v_add_u32 v{vXO}, {sT0}, v{vXO}")
    A(f"s_lshl_b32 {sT0}, {sSP}, 18"); A(f"s_add_u32 {sT0}, {sT0}, {sMLA}")
    A(f"v_lshl_add_u32 v{vF}, {t0}, 4, {sT0}")
    A(f"v_cmp_gt_u32 vcc, {MLW}, {t0}")
    A(f"v_cndmask_b32 v{vML}, v{vML}, v{vF}, vcc")
    A(f"s_lshl_b32 {sT0}, {sSP}, 8")
    A(f"s_or_b32 {sROLE}, {sROLE}, {sT0}")
    A(f"v_lshrrev_b32 v{vF}, 5, v0")
    A(f"v_lshlrev_b32 v{vF}, 9, v{vF}")
    A(f"v_lshl_add_u32 v{vF}, {t2}, 5, v{vF}")
    A(f"v_bfe_u32 v{vG}, v0, 4, 1")
    A(f"v_lshl_add_u32 v{vF}, v{vG}, 4, v{vF}")
    g.wait("x")
    stamp("x")
    if dbgt: A("s_memrealtime s[98:99]")
    A(f"v_add_u32 v{vE}, 0x9e3779b9, v{vE}")
    A(f"v_xor_b32 v{vE+1}, 0x7f4a7c15, v{vE+1}")
    A(f"v_and_b32 v{vT8}, 0xff, v{vE}")
    for j in range(8):
        A(f"v_perm_b32 v{vS+j}, v{vQ[j//2]}, v{vQ[j//2]}, {sSELHI if j % 2 else sSELLO}")
    def buildP(j):
        for m in range(4): A(f"v_and_b32 v{vA[j%2]+m}, v{vS+j}, v{vM[m]}")
    buildP(0)
    for j in range(8):
        g.wait(f"pc{j}")
        A(f"v_mfma_f32_16x16x32_bf16 {R4(vD)}, {R4(vA[j%2])}, {A4(AP+4*j)}, {'0' if j == 0 else R4(vD)}")
        if j < 7: buildP(j + 1)
        pump(W0)
    events.add("s1done")
    stamp("f")
    A(f"s_and_b32 {sT0}, {sH}, 1"); A(f"s_lshl_b32 {sT0}, {sT0}, 20")
    A(f"s_lshr_b32 {sT1}, {sH}, 1"); A(f"s_lshl_b32 {sT1}, {sT1}, 10")
    A(f"s_add_u32 {sT0}, {sT0}, {sT1}")
    A(f"s_lshl_b32 {sT1}, {sB}, 9")
    A(f"s_add_u32 {sT0}, {sT0}, {sT1}")
    A(f"s_add_u32 {sT0}, {sT0}, {QP}")
    A(f"v_lshlrev_b32 v{vPC}, 4, {t2}")
    A(f"v_lshl_add_u32 v{vPC}, {t3}, 18, v{vPC}")
    A(f"v_add_u32 v{vPC}, {sT0}, v{vPC}")
    A(f"ds_write_b128 v{vF}, {R4(vD)} offset:{L_S1}")
    A("s_waitcnt lgkmcnt(0)")
    barrier()
    if pub1:
        A(f"s_and_b32 {sT0}, {sROLE}, 0xc0")
        A(f"s_cbranch_scc1 L_nopub")
        for w_ in range(1, 4): A(f"ds_read_b128 {R4(vS+4*w_)}, v{vF} offset:{L_S1+1024*w_}")
        A("s_waitcnt lgkmcnt(0)")
        for i in (0, 2):
            A(f"v_pk_add_f32 {R2(vD+i)}, {R2(vD+i)}, {R2(vS+4+i)}")
            A(f"v_pk_add_f32 {R2(vS+8+i)}, {R2(vS+8+i)}, {R2(vS+12+i)}")
        for i in (0, 2): A(f"v_pk_add_f32 {R2(vD+i)}, {R2(vD+i)}, {R2(vS+8+i)}")
        for i in range(4): A(f"v_and_or_b32 v{vD+i}, v{vD+i}, {sMASK}, v{vT8}")
        if 'P' in abl: pass
        elif PAT == 1:
            A(f"buffer_atomic_swap_x2 {R2(vD)}, v{vXO}, {sWS}, 0 offen")
            A(f"buffer_atomic_swap_x2 {R2(vD+2)}, v{vXO}, {sWS}, 0 offen offset:8")
        elif PAT == 2:
            A(f"buffer_store_dwordx4 {R4(vD)}, v{vXO}, {sWS}, 0 offen")
            A("buffer_wbl2 sc1")
        else: A(f"buffer_store_dwordx4 {R4(vD)}, v{vXO}, {sWS}, 0 offen {psc}")
        g.label("L_nopub")
    else:
        for w_ in range(4): A(f"ds_read_b32 v{vS+w_}, v{vXE} offset:{L_S1+1024*w_}")
        A("s_waitcnt lgkmcnt(0)")
        A(f"v_add_f32 v{vS}, v{vS}, v{vS+1}")
        A(f"v_add_f32 v{vS+2}, v{vS+2}, v{vS+3}")
        A(f"v_add_f32 v{vS}, v{vS}, v{vS+2}")
        A(f"v_and_or_b32 v{vG}, v{vS}, {sMASK}, v{vT8}")
        g.vm(f"buffer_store_dword v{vG}, v{vXO}, {sWS}, 0 offen sc1", "pub")
    events.add("pub")
    stamp("p")
    while not (known("gq1") and known(f"k{GQ}")):
        pump(W)
        i = g.done + 1
        if "gq1" in g.issued: i = min(i, g.issued.index("gq1"))
        g.wait(g.issued[i])
    pump(W)
    stamp("g")
    def untag(regs, acc):
        for r in regs: A(f"v_xor_b32 v{r}, v{r}, v{vT8}")
        rs = list(regs)
        if len(rs) >= 3:
            A(f"v_or3_b32 {acc}, v{rs[0]}, v{rs[1]}, v{rs[2]}"); rs = rs[3:]
        else:
            A(f"v_or_b32 {acc}, v{rs[0]}, v{rs[1]}"); rs = rs[2:]
        while len(rs) >= 2:
            A(f"v_or3_b32 {acc}, {acc}, v{rs[0]}, v{rs[1]}"); rs = rs[2:]
        if rs: A(f"v_or_b32 {acc}, {acc}, v{rs[0]}")
        A(f"v_and_b32 {acc}, 0xff, {acc}")
        A(f"v_cmp_ne_u32 vcc, 0, {acc}")
    def test_gq(lbl):
        untag([vS + r for r in range(8)], t0)
        A(f"s_cbranch_vccz {lbl}")
    test_gq("L_gq_ok")
    spin("L_gq", gq_loads, test_gq)
    for i in range(4): A(f"v_permlane32_swap_b32 v{vS+i}, v{vS+4+i}")
    for i in range(4): A(f"v_add_f32 v{vS+i}, v{vS+i}, v{vS+4+i}")
    for i in range(2): A(f"v_permlane16_swap_b32 v{vS+i}, v{vS+2+i}")
    for i in range(2): A(f"v_add_f32 v{vS+i}, v{vS+i}, v{vS+2+i}")
    A(f"v_cvt_pk_bf16_f32 v{vQ[0]}, v{vS}, v{vS+1}")
    A(f"v_cvt_pk_bf16_f32 v{vQ[1]}, v{vS}, v{vS+1}")
    A(f"v_permlane16_swap_b32 v{vQ[0]}, v{vQ[1]}")
    A(f"v_mov_b32 v{vQ[2]}, v{vQ[0]}")
    A(f"v_mov_b32 v{vQ[3]}, v{vQ[1]}")
    A(f"v_permlane32_swap_b32 v{vQ[0]}, v{vQ[2]}")
    A(f"v_permlane32_swap_b32 v{vQ[1]}, v{vQ[3]}")
    stamp("q")
    if dbgt: A("s_memrealtime s[92:93]")
    def reduce4(t, dst):
        A(f"v_add_f32_dpp v{t[0]}, v{t[0]}, v{t[0]} row_ror:8 row_mask:0xf bank_mask:0x3")
        A(f"v_add_f32_dpp v{t[1]}, v{t[1]}, v{t[1]} row_ror:8 row_mask:0xf bank_mask:0x3")
        A(f"v_add_f32_dpp v{t[0]}, v{t[2]}, v{t[2]} row_ror:8 row_mask:0xf bank_mask:0xc")
        A(f"v_add_f32_dpp v{t[1]}, v{t[3]}, v{t[3]} row_ror:8 row_mask:0xf bank_mask:0xc")
        A(f"v_add_f32_dpp v{t[0]}, v{t[0]}, v{t[0]} row_half_mirror row_mask:0xf bank_mask:0x5")
        A(f"v_add_f32_dpp v{t[0]}, v{t[1]}, v{t[1]} row_half_mirror row_mask:0xf bank_mask:0xa")
        A(f"v_add_f32_dpp v{t[0]}, v{t[0]}, v{t[0]} quad_perm:[1,0,3,2] row_mask:0xf bank_mask:0xf")
        A(f"v_add_f32_dpp v{dst}, v{t[0]}, v{t[0]} quad_perm:[2,3,0,1] row_mask:0xf bank_mask:0xf")
    ktmp = kslot(12)
    for jg in range(16):
        nowait = known(f"k{4*jg+3}")
        g.wait(f"k{4*jg+3}")
        if 4 * jg >= NK:
            for r in range(16): A(f"v_accvgpr_read_b32 v{ktmp+r}, a{AK + 4*(4*jg-NK) + r}")
            kb = ktmp
        else: kb = kslot(4 * jg)
        for m in range(4):
            for i in range(4):
                kr = kb + 4 * i + m
                if m == 0: A(f"v_dot2_f32_bf16 v{vT[i]}, v{kr}, v{vQ[m]}, 0")
                else: A(f"v_dot2c_f32_bf16 v{vT[i]}, v{kr}, v{vQ[m]}")
        events.add(f"kg{jg}")
        pump(max(WK, g.outstanding() + (jg % 2 if nowait else 0)))
        reduce4(vT, vS + jg)
    stamp("k")
    with Trickle(True):
        C = math.log2(math.e) / math.sqrt(128.0)
        if mimic:
            C = math.log2(math.e)
            def rnd_pairs():
                for i in range(0, 16, 2): A(f"v_cvt_pk_bf16_f32 v{vS+i+1}, v{vS+i}, v{vS+i+1}")
                for i in range(0, 16, 2):
                    A(f"v_lshlrev_b32 v{vS+i}, 16, v{vS+i+1}")
                    A(f"v_and_b32 v{vS+i+1}, 0xffff0000, v{vS+i+1}")
            rnd_pairs()
            for i in range(16): A(f"v_mul_f32 v{vS+i}, {f2u(128.0 ** -0.5):#x}, v{vS+i}")
            rnd_pairs()
        A(f"v_max3_f32 {t0}, v{vS}, v{vS+1}, v{vS+2}")
        for i in range(3, 15, 2): A(f"v_max3_f32 {t0}, {t0}, v{vS+i}, v{vS+i+1}")
        A(f"v_max_f32 {t0}, {t0}, v{vS+15}")
        A(f"v_max_f32_dpp {t0}, {t0}, {t0} row_ror:4 row_mask:0xf bank_mask:0xf")
        A(f"v_max_f32_dpp {t0}, {t0}, {t0} row_ror:8 row_mask:0xf bank_mask:0xf")
        A(f"v_max_f32_dpp {t0}, {t0}, {t0} row_bcast:15 row_mask:0xa bank_mask:0xf")
        A(f"v_max_f32_dpp {t0}, {t0}, {t0} row_bcast:31 row_mask:0xc bank_mask:0xf")
        A(f"v_readlane_b32 {sM}, {t0}, 63")
        A(f"v_mov_b32 {t1}, {f2u(-C):#x}")
        A(f"v_mul_f32 {t1}, {sM}, {t1}")
        for i in range(16): A(f"v_fmamk_f32 v{vS+i}, v{vS+i}, {f2u(C):#x}, {t1}")
        for i in range(16): A(f"v_exp_f32 v{vS+i}, v{vS+i}")
        A(f"v_sub_f32 v{vMW}, 0, {t1}")
        A(f"v_add_f32 {t0}, v{vS}, v{vS+1}")
        A(f"v_add_f32 {t2}, v{vS+2}, v{vS+3}")
        for i in range(4, 16, 2):
            A(f"v_add_f32 {t0}, {t0}, v{vS+i}")
            A(f"v_add_f32 {t2}, {t2}, v{vS+i+1}")
        A(f"v_add_f32 {t0}, {t0}, {t2}")
        for i in range(16): A(f"v_cvt_pk_bf16_f32 v{vS+i}, v{vS+i}, v{vS+i}")
        A(f"v_add_f32_dpp {t0}, {t0}, {t0} row_ror:4 row_mask:0xf bank_mask:0xf")
        A(f"v_add_f32_dpp {t0}, {t0}, {t0} row_ror:8 row_mask:0xf bank_mask:0xf")
        A(f"v_add_f32_dpp {t0}, {t0}, {t0} row_bcast:15 row_mask:0xa bank_mask:0xf")
        A(f"v_add_f32_dpp {t0}, {t0}, {t0} row_bcast:31 row_mask:0xc bank_mask:0xf")
        A(f"v_readlane_b32 {sM}, {t0}, 63")
        A(f"v_mov_b32 v{vL}, {sM}")
    A(f"v_lshrrev_b32 {t0}, 6, v0")
    A(f"v_lshlrev_b32 {t0}, 3, {t0}")
    A(f"ds_write_b64 {t0}, {R2(vMW)} offset:{L_ML}")
    def ml_publish():
        A("s_waitcnt lgkmcnt(0)")
        barrier()
        A(f"s_and_b32 {sT0}, {sROLE}, 0xc0")
        A("s_cbranch_scc1 L_noml")
        A(f"v_and_b32 {t0}, 3, v0")
        A(f"v_lshlrev_b32 {t0}, 3, {t0}")
        A(f"ds_read_b64 v[{vT[2]}:{vT[3]}], {t0} offset:{L_ML}")
        A(f"v_mov_b32 v{vMLm+2}, v{vE}")
        A(f"v_mov_b32 v{vMLm+3}, v{vE+1}")
        A("s_waitcnt lgkmcnt(0)")
        A(f"v_max_f32_dpp v{vMLm}, {t2}, {t2} quad_perm:[1,0,3,2] row_mask:0xf bank_mask:0xf")
        A(f"v_max_f32_dpp v{vMLm}, v{vMLm}, v{vMLm} quad_perm:[2,3,0,1] row_mask:0xf bank_mask:0xf")
        A(f"v_sub_f32 {t2}, {t2}, v{vMLm}")
        A(f"v_exp_f32 {t2}, {t2}")
        A(f"v_mul_f32 {t2}, {t2}, {t3}")
        A(f"v_add_f32_dpp {t2}, {t2}, {t2} quad_perm:[1,0,3,2] row_mask:0xf bank_mask:0xf")
        A(f"v_add_f32_dpp v{vMLm+1}, {t2}, {t2} quad_perm:[2,3,0,1] row_mask:0xf bank_mask:0xf")
        if 'N' not in abl: A(f"buffer_store_dwordx4 {R4(vMLm)}, v{vML}, {sWS}, 0 offen sc1")
        g.label("L_noml")
        A("s_nop 1")
        events.add("mlpub")
    def test_ml(lbl):
        A(f"v_xor_b32 {t0}, v{vMLm+2}, v{vE}")
        A(f"v_xor_b32 {t1}, v{vMLm+3}, v{vE+1}")
        A(f"v_or_b32 {t0}, {t0}, {t1}")
        A(f"v_cmp_ne_u32 vcc, 0, {t0}")
        A(f"s_cbranch_vccz {lbl}")
    def test_fg(lbl):
        untag([vFG, vFG + 1], t0)
        A(f"s_and_b64 vcc, vcc, {sVM}")
        A(f"s_cbranch_vccz {lbl}")
    def bf16round(r):
        A(f"v_cvt_pk_bf16_f32 v{r}, v{r}, v{r}")
        A(f"v_and_b32 v{r}, 0xffff0000, v{r}")
    def gate_calc():
        for d in range(4):
            xr, gr = vXG + d, vXG + 4 + d
            A(f"v_lshlrev_b32 {t0}, 16, v{xr}")
            A(f"v_lshlrev_b32 {t1}, 16, v{gr}")
            A(f"v_and_b32 v{xr}, 0xffff0000, v{xr}")
            A(f"v_and_b32 v{gr}, 0xffff0000, v{gr}")
            A(f"v_mul_f32 {t0}, {t0}, {t1}")
            A(f"v_mul_f32 {t1}, v{xr}, v{gr}")
            A(f"v_cvt_pk_bf16_f32 {t0}, {t0}, {t1}")
            A(f"v_and_b32 {t1}, 0xffff0000, {t0}")
            A(f"v_lshlrev_b32 {t0}, 16, {t0}")
            if d == 0: A(f"v_add_f32 {t2}, {t0}, {t1}")
            else:
                A(f"v_add_f32 {t0}, {t0}, {t1}")
                A(f"v_add_f32 {t2}, {t2}, {t0}")
        for d in (1, 2, 4, 8): A(f"v_add_f32_dpp {t2}, {t2}, {t2} row_ror:{d} row_mask:0xf bank_mask:0xf")
        A(f"v_add_f32_dpp {t2}, {t2}, {t2} row_bcast:15 row_mask:0xa bank_mask:0xf")
        A(f"v_add_f32_dpp {t2}, {t2}, {t2} row_bcast:31 row_mask:0xc bank_mask:0xf")
        A(f"v_readlane_b32 {sT0}, {t2}, 63")
        A(f"v_mov_b32 v{vG}, {sT0}")
        bf16round(vG)
        A(f"v_mul_f32 v{vG}, {f2u(-math.log2(math.e)):#x}, v{vG}")
        A(f"v_exp_f32 v{vG}, v{vG}")
        A(f"v_add_f32 v{vG}, 1.0, v{vG}")
        A(f"v_rcp_f32 v{vG}, v{vG}")
        bf16round(vG)
        A(f"v_sub_f32 v{vOMG}, 1.0, v{vG}")
        bf16round(vOMG)
    def ffn_calc():
        test_fg("L_fg_ok")
        spin("L_fg", fg_loads, test_fg)
        u, up = vFG, vFG + 1
        A(f"v_cndmask_b32 v{u}, 0, v{u}, {sVM}")
        A(f"v_cndmask_b32 v{up}, 0, v{up}, {sVM}")
        for d in (4, 8):
            for r in (u, up): A(f"v_add_f32_dpp v{r}, v{r}, v{r} row_ror:{d} row_mask:0xf bank_mask:0xf")
        bf16round(u); bf16round(up)
        k1 = -2.0 * math.sqrt(2.0 / math.pi) * math.log2(math.e)
        A(f"v_mov_b32 {t2}, {f2u(k1):#x}")
        A(f"v_mul_f32 {t0}, v{u}, v{u}")
        A(f"v_fmamk_f32 {t0}, {t0}, {f2u(k1*0.044715):#x}, {t2}")
        A(f"v_mul_f32 {t0}, {t0}, v{u}")
        A(f"v_exp_f32 {t0}, {t0}")
        A(f"v_add_f32 {t0}, 1.0, {t0}")
        A(f"v_rcp_f32 {t0}, {t0}")
        A(f"v_mul_f32 v{u}, v{u}, {t0}")
        bf16round(u)
        A(f"v_mul_f32 v{u}, v{u}, v{up}")
        if WDLATE:
            bf16round(u)
            A(f"v_mul_f32 v{u}, v{u}, v{vOMG}")
        A(f"v_cvt_pk_bf16_f32 v{u}, v{u}, v{u}")
        for t in range(4):
            ab = kslot(12 + t) if WDLATE else fa
            for m in range(4):
                A(f"v_and_b32_dpp v{ab+m}, v{u}, v{vM[m]} row_newbcast:{t} row_mask:0xf bank_mask:0xf")
            if not WDLATE:
                A(f"v_mfma_f32_16x16x32_bf16 {R4(vD2)}, {R4(fa)}, {R4(kslot(t))}, {'0' if t == 0 else R4(vD2)}")
    vCA, vOA, sK1 = kslot(14), kslot(14) + 1, "s80"
    vTW, vTR, vF0, vAR = kslot(14) + 2, kslot(14) + 3, kslot(13), kslot(13) + 2
    vT12 = kslot(13) + 3
    def cons_addr():
        A(f"v_and_b32 v{vT12}, 0xfff, v{vE}")
        A(f"v_bfe_u32 {t0}, v0, 5, 1")
        A(f"v_lshlrev_b32 v{vCA}, 18, {t0}")
        A(f"v_and_b32 {t0}, 31, v0")
        A(f"v_lshl_add_u32 v{vCA}, {t0}, 11, v{vCA}")
        A(f"v_lshrrev_b32 {t1}, 6, v0")
        A(f"v_lshl_add_u32 v{vCA}, {t1}, 4, v{vCA}")
        A(f"s_lshl_b32 {sT0}, {sB}, 20")
        A(f"s_lshl_b32 {sT1}, {sH}, 6")
        A(f"s_add_u32 {sT0}, {sT0}, {sT1}")
        A(f"v_add_u32 v{vCA}, {sT0}, v{vCA}")
        A(f"s_mov_b32 {sK1}, {2 << 18}")
        A(f"v_bfe_u32 {t0}, v0, 2, 2")
        A(f"v_lshl_add_u32 {t0}, {t1}, 2, {t0}")
        A(f"s_lshl_b32 {sT0}, {sH}, 4")
        A(f"v_add_u32 {t0}, {sT0}, {t0}")
        A(f"v_and_b32 {t2}, 0x1e0, {t0}")
        A(f"v_and_b32 {t3}, 1, {t0}")
        A(f"v_lshl_add_u32 {t2}, {t3}, 4, {t2}")
        A(f"v_bfe_u32 {t3}, {t0}, 1, 4")
        A(f"v_add_lshl_u32 {t0}, {t2}, {t3}, 1")
        A(f"s_lshl_b32 {sT0}, {sB}, 10")
        A(f"v_add_u32 {t0}, {sT0}, {t0}")
        A(f"v_and_b32 {t2}, 0x33, v0")
        A(f"v_mov_b32 {t3}, {OOB}")
        A(f"v_cmp_eq_u32 vcc, 0, {t2}")
        A(f"v_cndmask_b32 v{vOA}, {t3}, {t0}, vcc")
    def tr_addr():
        A(f"v_lshrrev_b32 {t1}, 6, v0")
        A(f"v_mul_u32_u24 {t1}, {32*RS}, {t1}")
        A(f"v_add_u32 {t1}, {L_T}, {t1}")
        A(f"v_bfe_u32 {t3}, v0, 4, 2")
        A(f"v_mul_u32_u24 {t0}, {RS}, {t3}")
        A(f"v_and_b32 {t2}, 15, v0")
        A(f"v_lshl_add_u32 {t0}, {t2}, 4, {t0}")
        A(f"v_add_u32 v{vTW}, {t0}, {t1}")
        A(f"v_bfe_u32 {t0}, v0, 2, 2")
        A(f"v_lshl_add_u32 {t0}, {t3}, 3, {t0}")
        A(f"v_mul_u32_u24 {t0}, {RS}, {t0}")
        A(f"v_and_b32 {t2}, 3, v0")
        A(f"v_lshl_add_u32 {t0}, {t2}, 3, {t0}")
        A(f"v_add_u32 v{vTR}, {t0}, {t1}")
        A(f"v_mul_u32_u24 {t0}, 320, {t2}")
        A(f"v_lshl_add_u32 v{vAR}, {t3}, 4, {t0}")
    def transpose(kb):
        if kb == 0: tr_addr()
        A("s_waitcnt lgkmcnt(0)")
        for jj in range(8): A(f"ds_write_b128 v{vTW}, {R4(kslot(WO0+8*kb+jj))} offset:{4*jj*RS}")
        A("s_waitcnt lgkmcnt(0)")
        for nb in range(8):
            for hf in range(2):
                A(f"ds_read_b64_tr_b16 {R2(kslot(WO0+8*kb+nb)+2*hf)}, v{vTR} offset:{hf*4*RS+nb*32}")
    def ffn_relayout():
        for r in range(4): A(f"v_mul_f32 v{vD2+r}, v{vD2+r}, v{vOMG}")
        A(f"v_lshrrev_b32 {t1}, 6, v0")
        A(f"v_lshlrev_b32 {t1}, 9, {t1}")
        A(f"v_and_b32 {t2}, 15, v0")
        A(f"v_lshl_add_u32 {t0}, {t2}, 5, {t1}")
        A(f"v_bfe_u32 {t3}, v0, 4, 1")
        A(f"v_lshl_add_u32 {t0}, {t3}, 4, {t0}")
        A(f"ds_write_b128 {t0}, {R4(vD2)} offset:{L_F}")
        A(f"v_bfe_u32 {t3}, v0, 4, 2")
        A(f"v_lshl_add_u32 {t1}, {t3}, 7, {t1}")
        A(f"v_lshl_add_u32 {t1}, {t2}, 2, {t1}")
        A("s_waitcnt lgkmcnt(0)")
        A(f"ds_read_b32 v{vF0}, {t1} offset:{L_F}")
        A(f"ds_read_b32 v{vF0+1}, {t1} offset:{L_F+64}")
    def calc_f():
        if PM == "W": cons_addr()
        test_ml("L_ml_ok")
        spin("L_ml", ml_loads, test_ml)
        A(f"v_max_f32_dpp {t0}, v{vMLm}, v{vMLm} quad_perm:[1,0,3,2] row_mask:0xf bank_mask:0xf")
        A(f"v_max_f32_dpp {t0}, {t0}, {t0} quad_perm:[2,3,0,1] row_mask:0xf bank_mask:0xf")
        A(f"v_sub_f32 {t1}, v{vMLm}, {t0}")
        A(f"v_sub_f32 {t2}, v{vMW}, {t0}")
        A(f"v_exp_f32 {t1}, {t1}")
        A(f"v_exp_f32 {t2}, {t2}")
        A(f"v_mul_f32 {t1}, {t1}, v{vMLm+1}")
        for d in ("[1,0,3,2]", "[2,3,0,1]"): A(f"v_add_f32_dpp {t1}, {t1}, {t1} quad_perm:{d} row_mask:0xf bank_mask:0xf")
        A(f"v_rcp_f32 {t1}, {t1}")
        A(f"v_mul_f32 {t2}, {t2}, v{vG}")
        A(f"v_mul_f32 v{vF}, {t2}, {t1}")
    st = {}; ntr = [0]
    buildA(0, vS, 0)
    for j in range(64):
        g.wait(f"v{j}")
        A(f"v_mfma_f32_16x16x32_bf16 {R4(vD)}, {R4(vA[j%2])}, {A4(4*j)}, {'0' if j == 0 else R4(vD)}")
        if TAP and j >= TAP[2]:
            pump(int(round(TAP[0] + (TAP[1] - TAP[0]) * min(1.0, (j - TAP[2]) / float(TAP[3] - TAP[2])))))
        else: pump(WV)
        if j < 63: buildA((j + 1) % 2, vS + (j + 1) // 4, 4 * ((j + 1) % 4))
        if j == JB:
            ml_publish()
        elif "gate" not in st and known("gw"):
            with Trickle(True): gate_calc()
            st["gate"] = j
        elif "ffn" not in st and known("fg1" if WDLATE else "wd3"):
            ffn_calc(); st["ffn"] = j
        elif "f" not in st and "gate" in st and known("mlld"):
            calc_f(); st["f"] = j
        elif "rel" not in st and "ffn" in st and j > st["ffn"] + 1:
            ffn_relayout(); st["rel"] = j
        elif ntr[0] < 4 and known(f"wo{8*ntr[0]+7}"):
            transpose(ntr[0]); st[f"tr{ntr[0]}"] = j; ntr[0] += 1
    pump(63)
    assert len(st) == 8 and pos[0] == len(seq), (st, pos[0], len(seq))
    print(st, file=sys.stderr)
    stamp("v")
    if dbgt: A("s_memrealtime s[94:95]")
    for r in range(4): A(f"v_mul_f32 v{vD+r}, v{vD+r}, v{vF}")
    A(f"v_cvt_pk_bf16_f32 v{vD}, v{vD}, v{vD+1}")
    A(f"v_cvt_pk_bf16_f32 v{vD+1}, v{vD+2}, v{vD+3}")
    A("s_mov_b32 exec_hi, 0")
    A(f"ds_write_b64 v{vLDS}, {R2(vD)} offset:{L_O}")
    A("s_mov_b32 exec_hi, -1")
    A("s_waitcnt lgkmcnt(0)")
    barrier()
    stamp("B")
    for kb in range(4): A(f"ds_read_b128 {R4(kslot(8+kb))}, v{vAR} offset:{L_O+64*kb}")
    if GRP:
        post = []
        for grp in range(4):
            for kb in range(4):
                if grp == 0: A(f"s_waitcnt lgkmcnt({3-kb})")
                for nb in (2 * grp, 2 * grp + 1):
                    A(f"v_mfma_f32_16x16x32_bf16 {R4(kslot(nb))}, {R4(kslot(8+kb))}, {R4(kslot(WO0+8*kb+nb))}, {'0' if kb == 0 else R4(kslot(nb))}")
                    if kb >= 2 and post: A(post.pop(0))
            for nb in (2 * grp, 2 * grp + 1): post.append(f"v_pk_add_f32 {R2(kslot(nb))}, {R2(kslot(nb))}, {R2(kslot(nb)+2)}")
            for nb in (2 * grp, 2 * grp + 1): post.append(f"v_add_f32_dpp v{vD+(nb&1)}, v{kslot(nb)}, v{kslot(nb)+1} quad_perm:[0,1,2,3] row_mask:{1<<(nb>>1):#x} bank_mask:0xf")
        for p_ in post: A(p_)
    else:
        for kb in range(4):
            A(f"s_waitcnt lgkmcnt({3-kb})")
            if kb == 0: stamp("R")
            for nb in range(8):
                A(f"v_mfma_f32_16x16x32_bf16 {R4(kslot(nb))}, {R4(kslot(8+kb))}, {R4(kslot(WO0+8*kb+nb))}, {'0' if kb == 0 else R4(kslot(nb))}")
        for nb in range(8): A(f"v_pk_add_f32 {R2(kslot(nb))}, {R2(kslot(nb))}, {R2(kslot(nb)+2)}")
        for nb in range(8):
            A(f"v_add_f32_dpp v{vD+(nb&1)}, v{kslot(nb)}, v{kslot(nb)+1} quad_perm:[0,1,2,3] row_mask:{1<<(nb>>1):#x} bank_mask:0xf")
    A(f"v_pk_add_f32 {R2(vD)}, {R2(vD)}, {R2(vF0)}")
    for r in range(2): A(f"v_and_or_b32 v{vD+r}, v{vD+r}, {sMASK12}, v{vT12}")
    g.vm(f"buffer_store_dwordx2 {R2(vD)}, v{vY}, {sWS}, 0 offen {ysc}", "ypub")
    stamp("y")
    yb = kslot(0)
    if PM == "W":
        assert ydense == 2
        A(f"s_cmp_lg_u32 {sSP}, 0")
        A("s_cbranch_scc1 L_notcons" if 'Y' not in abl else "s_branch L_fin")
        yr = kslot(8)
        A("s_mov_b64 s[64:65], -1"); A("s_mov_b64 s[66:67], -1")
        A(f"s_mov_b32 {sSPIN}, {spin_max}")
        g.label("L_slow")
        A("s_mov_b64 exec, s[64:65]")
        A(f"buffer_load_dwordx4 {R4(yr)}, v{vCA}, {sWS}, 0 offen {lsc}")
        A("s_mov_b64 exec, s[66:67]")
        A(f"buffer_load_dwordx4 {R4(yr+4)}, v{vCA}, {sWS}, {sK1} offen {lsc}")
        A("s_mov_b64 exec, -1")
        A(f"s_sub_u32 {sSPIN}, {sSPIN}, 1")
        for k in range(2):
            A(f"s_waitcnt vmcnt({1-k})")
            for r in range(4): A(f"v_xor_b32 v{yb+4*k+r}, v{yr+4*k+r}, v{vT12}")
            A(f"v_or3_b32 {t2}, v{yb+4*k}, v{yb+4*k+1}, v{yb+4*k+2}")
            A(f"v_bitop3_b32 {t2}, {t2}, v{yb+4*k+3}, {sLOW} bitop3:0xa8")
            A(f"v_cmp_ne_u32 s[{64+2*k}:{65+2*k}], 0, {t2}")
        A(f"v_pk_add_f32 {R2(yb)}, {R2(yb)}, {R2(yb+4)}")
        A("s_or_b64 vcc, s[64:65], s[66:67]")
        A("s_cbranch_scc0 L_got")
        if SL: A(f"s_sleep {SL}")
        A(f"s_cmp_lg_u32 {sSPIN}, 0")
        A("s_cbranch_scc1 L_slow")
        g.label("L_got")
        stamp("Z")
        A(f"v_pk_add_f32 {R2(yb+2)}, {R2(yb+2)}, {R2(yb+6)}")
        reduce4([yb, yb + 1, yb + 2, yb + 3], yb)
        A(f"v_mov_b32 v{yb+1}, v{yb}")
        A(f"v_permlane32_swap_b32 v{yb}, v{yb+1}")
        A(f"v_add_f32 v{yb}, v{yb}, v{yb+1}")
        A(f"v_mov_b32 v{yb+1}, v{yb}")
        A(f"v_permlane16_swap_b32 v{yb}, v{yb+1}")
        A(f"v_add_f32 v{yb}, v{yb}, v{yb+1}")
        A(f"v_cvt_pk_bf16_f32 v{yb}, v{yb}, v{yb}")
        A(f"buffer_store_short v{yb}, v{vOA}, {sOUT}, 0 offen {outsc}")
        A("s_branch L_fin")
    else:
        A(f"s_cmp_lg_u32 {sROLE}, 0")
        A("s_cbranch_scc1 L_notcons" if 'Y' not in abl else "s_branch L_fin")
        if ydense:
            A(f"v_lshrrev_b32 {t0}, 2, v0")
            A(f"v_lshlrev_b32 {t0}, 11, {t0}")
            A(f"v_and_b32 {t1}, 3, v0")
            A(f"v_lshl_add_u32 {t0}, {t1}, 4, {t0}")
            A(f"s_lshl_b32 {sT0}, {sB}, {20 if ydense == 2 else 18}")
            if ydense == 1: A(f"s_add_u32 {sT0}, {sT0}, 0x200000")
            A(f"s_lshl_b32 {sT1}, {sH}, 6")
            A(f"s_add_u32 {sT0}, {sT0}, {sT1}")
            A(f"v_add_u32 {t0}, {sT0}, {t0}")
        else:
            A(f"v_bfe_u32 {t0}, v0, 2, 3")
            A(f"v_lshlrev_b32 {t0}, 18, {t0}")
            A(f"v_and_b32 {t1}, 3, v0")
            A(f"v_lshl_add_u32 {t0}, {t1}, 4, {t0}")
            A(f"v_lshrrev_b32 {t2}, 5, v0")
            A(f"v_lshl_add_u32 {t0}, {t2}, 11, {t0}")
            A(f"s_lshl_b32 {sT0}, {sB}, 15")
            A(f"s_lshl_b32 {sT1}, {sH}, 6")
            A(f"s_add_u32 {sT0}, {sT0}, {sT1}")
            A(f"v_add_u32 {t0}, {sT0}, {t0}")
        A(f"v_bfe_u32 v{vY}, v0, 4, 1")
        A(f"v_bfe_u32 {t2}, v0, 5, 1")
        A(f"v_lshl_add_u32 v{vY}, v{vY}, 1, {t2}")
        A(f"v_lshl_add_u32 v{vY}, {t1}, 2, v{vY}")
        A(f"v_lshlrev_b32 v{vY}, 1, v{vY}")
        A(f"s_lshl_b32 {sT0}, {sBH}, 5")
        A(f"v_add_u32 v{vY}, {sT0}, v{vY}")
        A(f"v_and_b32 {t2}, 12, v0")
        A(f"v_mov_b32 {t3}, {OOB}")
        A(f"v_cmp_eq_u32 vcc, 0, {t2}")
        A(f"v_cndmask_b32 v{vY}, {t3}, v{vY}, vcc")
        yr = kslot(8)
        P = [f"s[{64+2*k}:{65+2*k}]" for k in range(8)]
        for k in range(8):
            A(f"s_mov_b64 {P[k]}, -1")
            A(f"s_mov_b32 s{80+k}, {((k>>1)<<18) + ((k&1)<<15) if ydense == 2 else k*(32768 if ydense else 4096)}")
        A(f"s_mov_b32 {sSPIN}, {spin_max}")
        def issue_round():
            for k in range(8):
                A(f"s_mov_b64 exec, {P[k]}")
                A(f"buffer_load_dwordx4 {R4(yr+4*k)}, {t0}, {sWS}, s{80+k} offen {lsc}")
            A("s_mov_b64 exec, -1")
        def check(k):
            for r in range(4): A(f"v_xor_b32 v{yb+4*k+r}, v{yr+4*k+r}, v{vT8}")
            A(f"v_or3_b32 {t2}, v{yb+4*k}, v{yb+4*k+1}, v{yb+4*k+2}")
            A(f"v_or_b32 {t2}, {t2}, v{yb+4*k+3}")
            A(f"v_cmp_ne_u32_sdwa {P[k]}, {t2}, 0 src0_sel:BYTE_0 src1_sel:DWORD")
        def any_pending():
            A("s_nop 0")
            A(f"s_or_b64 s[56:57], {P[0]}, {P[1]}")
            A(f"s_or_b64 s[58:59], {P[2]}, {P[3]}")
            A(f"s_or_b64 s[62:63], {P[4]}, {P[5]}")
            A(f"s_or_b64 vcc, {P[6]}, {P[7]}")
            A("s_or_b64 s[56:57], s[56:57], s[58:59]")
            A("s_or_b64 vcc, vcc, s[62:63]")
            A("s_or_b64 vcc, vcc, s[56:57]")
        if PM == "A":
            g.label("L_slow")
            issue_round()
            A(f"s_sub_u32 {sSPIN}, {sSPIN}, 1")
            for k in range(8):
                A(f"s_waitcnt vmcnt({7-k})")
                check(k)
            any_pending()
            A("s_cbranch_scc0 L_got")
            A(f"s_cmp_lg_u32 {sSPIN}, 0")
            A("s_cbranch_scc1 L_slow")
        elif PM == "B":
            g.label("L_slow")
            for k in range(8):
                A(f"s_mov_b64 exec, {P[k]}")
                A(f"s_cbranch_execz L_ns{k}")
                A(f"buffer_load_dwordx4 {R4(yr+4*k)}, {t0}, {sWS}, s{80+k} offen {lsc}")
                g.label(f"L_ns{k}")
            A("s_mov_b64 exec, -1")
            A(f"s_sub_u32 {sSPIN}, {sSPIN}, 1")
            A("s_waitcnt vmcnt(0)")
            for k in range(8):
                A(f"s_cmp_eq_u64 {P[k]}, 0")
                A(f"s_cbranch_scc1 L_skip{k}")
                check(k)
                g.label(f"L_skip{k}")
            any_pending()
            A("s_cbranch_scc0 L_got")
            A(f"s_cmp_lg_u32 {sSPIN}, 0")
            A("s_cbranch_scc1 L_slow")
        elif PM == "C":
            g.label("L_slow")
            issue_round()
            A(f"s_sub_u32 {sSPIN}, {sSPIN}, 1")
            for hk in range(4):
                A(f"s_or_b64 vcc, {P[2*hk]}, {P[2*hk+1]}")
                A(f"s_cbranch_scc0 L_skip{hk}")
                A(f"s_waitcnt vmcnt({6-2*hk})")
                check(2*hk); check(2*hk+1)
                g.label(f"L_skip{hk}")
            any_pending()
            A("s_cbranch_scc0 L_got")
            A(f"s_cmp_lg_u32 {sSPIN}, 0")
            A("s_cbranch_scc1 L_slow")
        else:
            g.label("L_slow")
            issue_round()
            A(f"s_sub_u32 {sSPIN}, {sSPIN}, 1")
            for k in range(8):
                A(f"s_waitcnt vmcnt({7-k})")
                check(k)
            A(f"s_bcnt1_i32_b64 {sT0}, {P[0]}")
            for k in range(1, 8):
                A(f"s_bcnt1_i32_b64 {sT1}, {P[k]}")
                A(f"s_add_u32 {sT0}, {sT0}, {sT1}")
            A(f"s_cmp_eq_u32 {sT0}, 0")
            A("s_cbranch_scc1 L_got")
            A(f"s_cmp_eq_u32 {sSPIN}, 0")
            A("s_cbranch_scc1 L_got")
            A(f"s_cmp_gt_u32 {sT0}, {POLLTH}")
            A("s_cbranch_scc1 L_slow")
            g.label("L_fast")
            issue_round()
            A(f"s_sub_u32 {sSPIN}, {sSPIN}, 1")
            A(f"s_waitcnt vmcnt({8*(POLLR-1)})")
            for k in range(8):
                A(f"s_cmp_eq_u64 {P[k]}, 0")
                A(f"s_cbranch_scc1 L_skip{k}")
                check(k)
                g.label(f"L_skip{k}")
            A("s_nop 0")
            A(f"s_or_b64 s[56:57], {P[0]}, {P[1]}")
            A(f"s_or_b64 s[58:59], {P[2]}, {P[3]}")
            A(f"s_or_b64 s[62:63], {P[4]}, {P[5]}")
            A(f"s_or_b64 vcc, {P[6]}, {P[7]}")
            A("s_or_b64 s[56:57], s[56:57], s[58:59]")
            A("s_or_b64 vcc, vcc, s[62:63]")
            A("s_or_b64 vcc, vcc, s[56:57]")
            A("s_cbranch_scc0 L_got")
            A(f"s_cmp_lg_u32 {sSPIN}, 0")
            A("s_cbranch_scc1 L_fast")
        g.label("L_got")
        stamp("Z")
        for stp in (16, 8, 4):
            for i in range(0, stp, 2):
                A(f"v_pk_add_f32 {R2(yb+i)}, {R2(yb+i)}, {R2(yb+i+stp)}")
        for d in (4, 8):
            for r in range(4): A(f"v_add_f32_dpp v{yb+r}, v{yb+r}, v{yb+r} row_ror:{d} row_mask:0xf bank_mask:0xf")
        A(f"v_permlane32_swap_b32 v{yb}, v{yb+1}")
        A(f"v_permlane32_swap_b32 v{yb+2}, v{yb+3}")
        A(f"v_add_f32 v{yb}, v{yb}, v{yb+1}")
        A(f"v_add_f32 v{yb+2}, v{yb+2}, v{yb+3}")
        A(f"v_permlane16_swap_b32 v{yb}, v{yb+2}")
        A(f"v_add_f32 v{yb}, v{yb}, v{yb+2}")
        A(f"v_cvt_pk_bf16_f32 v{yb}, v{yb}, v{yb}")
        A(f"buffer_store_short v{yb}, v{vY}, {sOUT}, 0 offen {outsc}")
        A("s_branch L_fin")
    g.label("L_notcons")
    A(f"s_or_b32 {sT0}, {sROLE}, {sBH}")
    A(f"s_cmp_lg_u32 {sT0}, {256 if PM == 'W' else 64}")
    A("s_cbranch_scc1 L_fin")
    A(f"v_and_b32 {t0}, 63, v0")
    A(f"v_and_b32 {t1}, 7, {t0}")
    A(f"v_lshrrev_b32 {t0}, 3, {t0}")
    A(f"v_lshlrev_b32 {t0}, 7, {t0}")
    A(f"v_lshl_add_u32 {t0}, {t1}, 18, {t0}")
    A(f"v_add_u32 {t0}, {MLBASE}, {t0}")
    A(f"s_mov_b32 {sSPIN}, {spin_max}" if not dry else f"s_mov_b32 {sSPIN}, s50")
    g.label("L_ver")
    for k in range(4):
        A(f"s_mov_b32 {sOFF}, {k*1024}")
        A(f"buffer_load_dwordx4 {R4(yb+4*k)}, {t0}, {sWS}, {sOFF} offen sc1")
    A(f"s_sub_u32 {sSPIN}, {sSPIN}, 1")
    A("s_waitcnt vmcnt(0)")
    for k in range(4):
        A(f"v_xor_b32 v{yb+4*k+2}, v{yb+4*k+2}, v{vE}")
        A(f"v_xor_b32 v{yb+4*k+3}, v{yb+4*k+3}, v{vE+1}")
    A(f"v_or3_b32 {t2}, v{yb+2}, v{yb+3}, v{yb+6}")
    A(f"v_or3_b32 {t2}, {t2}, v{yb+7}, v{yb+10}")
    A(f"v_or3_b32 {t2}, {t2}, v{yb+11}, v{yb+14}")
    A(f"v_or_b32 {t2}, {t2}, v{yb+15}")
    A(f"v_cmp_ne_u32 vcc, 0, {t2}")
    A("s_cbranch_vccz L_verok")
    A(f"s_cmp_lg_u32 {sSPIN}, 0")
    A("s_cbranch_scc1 L_ver")
    g.label("L_verok")
    A(f"v_add_u32 {t2}, {(1 - 0x9e3779b9) & 0xffffffff:#x}, v{vE}")
    A(f"s_mov_b32 {sOFF}, {EPOCH}")
    A(f"buffer_store_dword {t2}, off, {sWS}, {sOFF} sc1")
    g.label("L_fin")
    if meas:
        if meas[0] == "E": A("s_memrealtime s[94:95]")
        A("s_memrealtime s[96:97]")
        A("s_waitcnt lgkmcnt(0)")
        if meas[0] == "R":
            A("s_getreg_b32 s94, hwreg(HW_REG_XCC_ID)")
            A("s_and_b32 s94, s94, 15")
            A("s_add_u32 s94, s94, 1")
            A("s_cmp_eq_u32 s2, 0")
            A("s_cselect_b32 s94, s94, 0")
        elif meas[0] == "F":
            A("s_mov_b32 s94, 100")
            if meas[2] < 8:
                A("s_and_b32 s95, s2, 7")
                A(f"s_cmp_eq_u32 s95, {meas[2]}")
                A("s_cselect_b32 s94, s94, 0")
        elif meas[0] == "C":
            A("s_load_dword s94, s[100:101], 0 glc")
            A("s_waitcnt lgkmcnt(0)")
            A("s_cmp_lg_u32 s94, s92")
            A("s_cselect_b32 s94, 100, 0")
            A("s_and_b32 s95, s2, 7")
            A(f"s_cmp_eq_u32 s95, {meas[2]}")
            A("s_cselect_b32 s94, s94, 0")
        elif meas[0] == "X":
            A("s_and_b32 s95, s2, 7")
            A(f"s_and_b32 s94, {sROLE}, 0xc0")
            A("s_or_b32 s95, s95, s94")
            A(f"s_cmp_lg_u32 s95, {meas[2]}")
            A("s_cbranch_scc1 L_end")
            A("s_load_dword s94, s[100:101], 0 glc")
            A("s_waitcnt lgkmcnt(0)")
            A("s_sub_u32 s94, s92, s94")
            A("s_add_u32 s94, s94, 50")
            A("s_max_i32 s94, s94, 0")
            A("s_and_b32 s95, s2, 7")
            A(f"s_cmp_eq_u32 s95, {meas[2]}")
            A("s_cselect_b32 s94, s94, 0")
        else:
            A("s_sub_u32 s94, s94, s92" if meas[0] != "S" else "s_mov_b32 s94, s88")
            if len(meas) > 2:
                A("s_and_b32 s95, s2, 7")
                A(f"s_cmp_eq_u32 s95, {meas[2]}")
                A("s_cselect_b32 s94, s94, 0")
        A(f"s_mul_i32 s94, s94, {meas[1]}")
        A("s_min_u32 s94, s94, 20000")
        g.label("L_meas")
        A("s_memrealtime s[98:99]")
        A("s_waitcnt lgkmcnt(0)")
        A("s_sub_u32 s98, s98, s96")
        A("s_cmp_lt_u32 s98, s94")
        A("s_cbranch_scc1 L_meas")
    if dry:
        A("s_cmp_eq_u32 s51, 0")
        A("s_mov_b32 s51, 1")
        A(f"s_mov_b32 s50, {spin_max}")
        A("s_waitcnt vmcnt(0) lgkmcnt(0)")
        A("s_barrier")
        A("s_cbranch_scc0 L_fin2")
        A("s_branch L_again")
        g.label("L_fin2")
    if dbgt:
        A("s_memrealtime s[96:97]")
        A("s_mov_b32 s68, s86"); A("s_mov_b32 s69, s87"); A("s_mov_b32 s70, 256"); A("s_mov_b32 s71, 0x20000")
        A("s_waitcnt lgkmcnt(0)")
        A("s_not_b32 s91, s90")
        A("v_cmp_eq_u32 vcc, 0, v0")
        A("s_and_saveexec_b64 s[56:57], vcc")
        A("s_cbranch_execz L_end")
        for i, r in enumerate((91, 90, 98, 92, 94, 96)):
            A(f"v_mov_b32 v2, s{r}")
            A(f"buffer_atomic_umax v2, off, s[68:71], 0 offset:{4*i}")
            A("s_nop 2")
    if stamps:
        stamp()
        A("s_waitcnt lgkmcnt(0)")
        if spindiag:
            A("s_add_u32 s92, s90, s87"); A("s_addc_u32 s93, s91, 0")
        n = nstamp[0]
        A(f"s_mul_i32 {sT0}, s2, {8*n*(4 if wstamps else 1)}")
        A(f"s_add_u32 {sT0}, {sT0}, 0x8000000")
        A(f"v_mov_b32 {t0}, {sT0}")
        if wstamps:
            A(f"v_lshrrev_b32 {t1}, 6, v0")
            A(f"v_mul_u32_u24 {t1}, {8*n}, {t1}")
            A(f"v_add_u32 {t0}, {t0}, {t1}")
            A(f"v_and_b32 {t1}, 63, v0")
            A(f"v_cmp_eq_u32 vcc, 0, {t1}")
        else:
            A("v_cmp_eq_u32 vcc, 0, v0")
        A("s_and_saveexec_b64 s[56:57], vcc")
        A("s_cbranch_execz L_end")
        for i in range(n):
            r = stamp_regs[i]
            A(f"v_mov_b32 v2, s{r}"); A(f"v_mov_b32 v3, s{r+1}")
            A(f"global_store_dwordx2 {t0}, v[2:3], s[36:37] offset:{8*i}")
            A("s_nop 2")
        print("nstamps", n, file=sys.stderr)
    g.label("L_end")
    A("s_endpgm")
    g.raw('.section .rodata,"a"'); g.raw(".p2align 6")
    g.raw(f".amdhsa_kernel {NAME}_kernel")
    g.raw("  .amdhsa_next_free_vgpr 512"); g.raw("  .amdhsa_next_free_sgpr 102"); g.raw("  .amdhsa_accum_offset 256")
    g.raw("  .amdhsa_group_segment_fixed_size 0"); g.raw("  .amdhsa_kernarg_size 104"); g.raw("  .amdhsa_user_sgpr_count 2")
    g.raw("  .amdhsa_user_sgpr_kernarg_segment_ptr 1"); g.raw("  .amdhsa_system_sgpr_workgroup_id_x 1")
    g.raw(".end_amdhsa_kernel")
    open(fname, "w").write(g.text())

if __name__ == "__main__":
    ds = eval(sys.argv[1]) if len(sys.argv) > 1 else [dict()]
    fs = []
    for d in ds:
        fn = "k14_" + "_".join(f"{k}{str(v).replace(' ','')}" for k, v in d.items()) + ".s"
        gen(fn, **d); fs.append(fn)
    print(" ".join(fs))
```
